```python
import torch

def _softmax(x, axis=-1):
    return torch.softmax(x, dim=axis)
def _gelu(x):
    return torch.nn.functional.gelu(x, approximate="tanh")
def _silu(x):
    return torch.nn.functional.silu(x)
def _sigmoid(x):
    return torch.sigmoid(x)
def _layernorm(x, axis=-1, eps=1e-5):
    m = x.mean(dim=axis, keepdim=True)
    v = x.var(dim=axis, keepdim=True, unbiased=False)
    return (x - m) / torch.sqrt(v + eps)
def _scatter_add(tgt, idx, src, axis=0):
    return tgt.clone().index_add_(axis, idx, src)
def _segment_sum(src, seg, n):
    out = torch.zeros((n,) + src.shape[1:], dtype=src.dtype)
    return out.index_add_(0, seg, src)
def _pad(x, pw):
    flat = tuple(v for pair in reversed(pw) for v in pair)
    return torch.nn.functional.pad(x, flat)

kernel_name = 'parallel_sum__ssm_conv_s5__mixer_token_mlp__prompt'

def setup_inputs():

    _w = (lambda a: (lambda t: t.to(torch.bfloat16) if t.is_floating_point() else t)(torch.as_tensor(a)))
    def _A_setup():
        B, S, D = 1, 2048, 1024
        P = D
        Lambda_re = -0.5 * (lambda _x: torch.exp(torch.as_tensor(_x)))((lambda *s: torch.randn(*s, dtype=torch.bfloat16) * 0.1)(P))
        Lambda_im = (lambda *s: torch.randn(*s, dtype=torch.bfloat16) * 0.4)(P) * 1.0
        B_re = (lambda *s: torch.randn(*s, dtype=torch.bfloat16) * 0.2)(P, D) * (D ** -0.5)
        B_im = (lambda *s: torch.randn(*s, dtype=torch.bfloat16) * 0.2)(P, D) * (D ** -0.5)
        C_re = (lambda *s: torch.randn(*s, dtype=torch.bfloat16) * 0.2)(D, P) * (P ** -0.5)
        C_im = (lambda *s: torch.randn(*s, dtype=torch.bfloat16) * 0.2)(D, P) * (P ** -0.5)
        log_dt = (lambda *s: torch.randn(*s, dtype=torch.bfloat16) * 0.1)(P) * 0.3 - 2.0
        Dskip = (lambda *s: torch.randn(*s, dtype=torch.bfloat16) * 0.05)(D)
        return {
            "x": _w((lambda *s: torch.randn(*s, dtype=torch.bfloat16) * 0.05)(B, S, D)),
            "Lambda_re": _w(Lambda_re),
            "Lambda_im": _w(Lambda_im),
            "B_re": _w(B_re),
            "B_im": _w(B_im),
            "C_re": _w(C_re),
            "C_im": _w(C_im),
            "log_dt": _w(log_dt),
            "Dskip": _w(Dskip),
        }
    _A_in = _A_setup()

    def _B_setup():
        B, S, D, F = 1, 2048, 1024, 3584
        return {
            "x": _w((lambda *s: torch.randn(*s, dtype=torch.bfloat16) * 0.05)(B, S, D)),
            "w1": _w((lambda *s: torch.randn(*s, dtype=torch.bfloat16) * 0.8)(S, F) * (S ** -0.5)),
            "b1": _w((lambda *s: torch.randn(*s, dtype=torch.bfloat16) * 3.2)(F) * 0.02),
            "w2": _w((lambda *s: torch.randn(*s, dtype=torch.bfloat16) * 0.4)(F, S) * (F ** -0.5)),
            "b2": _w((lambda *s: torch.randn(*s, dtype=torch.bfloat16) * 1.6)(S) * 0.02),
        }
    _B_in = _B_setup()

    return {
        "A_x": _A_in["x"],
        "A_Lambda_re": _A_in["Lambda_re"],
        "A_Lambda_im": _A_in["Lambda_im"],
        "A_B_re": _A_in["B_re"],
        "A_B_im": _A_in["B_im"],
        "A_C_re": _A_in["C_re"],
        "A_C_im": _A_in["C_im"],
        "A_log_dt": _A_in["log_dt"],
        "A_Dskip": _A_in["Dskip"],
        "B_x": _B_in["x"],
        "B_w1": _B_in["w1"],
        "B_b1": _B_in["b1"],
        "B_w2": _B_in["w2"],
        "B_b2": _B_in["b2"],
    }

def reference(A_x, A_Lambda_re, A_Lambda_im, A_B_re, A_B_im, A_C_re, A_C_im, A_log_dt, A_Dskip, B_x, B_w1, B_b1, B_w2, B_b2):
    def _A_ref(x, Lambda_re, Lambda_im, B_re, B_im, C_re, C_im, log_dt, Dskip):
        Bsz, L, H = x.shape
        Lam = Lambda_re + 1j * Lambda_im
        Bmat = B_re + 1j * B_im
        Cmat = C_re + 1j * C_im
        dt = torch.exp(log_dt)
        Lam_bar = torch.exp(dt * Lam)
        B_bar = ((Lam_bar - 1.0) / Lam)[:, None] * Bmat
        Bu = torch.einsum("bld,pd->blp", x + 0j, B_bar)
        h = torch.zeros_like(Bu[:, 0, :])
        hs = []
        for t in range(L):
            h = Lam_bar[None, :] * h + Bu[:, t, :]
            hs.append(h)
        hseq = torch.stack(hs, 1)
        y = 2.0 * torch.einsum("blp,dp->bld", hseq, Cmat).real + x * Dskip[None, None, :]
        return y

    def _B_ref(x, w1, b1, w2, b2):
        B, S, D = x.shape
        h = _layernorm(x, axis=-1)
        u = torch.einsum("bsd,sf->bdf", h, w1) + b1
        u = _gelu(u)
        y = torch.einsum("bdf,fs->bds", u, w2) + b2
        return (lambda x, *d: x.permute(*d))(y, 0, 2, 1)

    x = A_x
    xn = _layernorm(x, axis=-1)
    return x + _A_ref(xn, A_Lambda_re, A_Lambda_im, A_B_re, A_B_im, A_C_re, A_C_im, A_log_dt, A_Dskip) + _B_ref(xn, B_w1, B_b1, B_w2, B_b2)
```

```python
import sys, struct, math

NAME = "parallel_sum__ssm_conv_s5__mixer_token_mlp__prompt"
KA = dict(x=0, lre=8, lim=16, bre=24, bim=32, cre=40, cim=48, ldt=56, dsk=64, w1=80, b1=88, w2=96, b2=104,
          out=112, dbg=120, ws=128)
MB = 1 << 20
WS_XN, WS_HH, WS_U, WS_HP = 0, 4 * MB, 8 * MB, 16 * MB
WS_TAB = 24 * MB
WS_AGG = 24 * MB + 65536
WS_FLG1 = 25 * MB
WS_FLG2 = 25 * MB + 65536
WS_XCH = 32 * MB

NS = 4
STG = 32768


def f2u(x):
    return struct.unpack('<I', struct.pack('<f', x))[0]


class E:
    def __init__(s):
        s.L = []
        s.n = 0

    def __call__(s, t):
        s.L.append(t)

    def lab(s, p="L"):
        s.n += 1
        return f"{p}_{s.n}"


def srd(e, sd, lo, hi, off, size):
    if off:
        e(f"s_add_u32 s{sd}, s{lo}, 0x{off:x}\ns_addc_u32 s{sd+1}, s{hi}, 0")
    else:
        e(f"s_mov_b32 s{sd}, s{lo}\ns_mov_b32 s{sd+1}, s{hi}")
    e(f"s_mov_b32 s{sd+2}, 0x{size:x}\ns_mov_b32 s{sd+3}, 0x20000")


def kd(name, vgpr=256, sgpr=96):
    return f""".section .rodata,"a"
.p2align 6
.amdhsa_kernel {name}
  .amdhsa_next_free_vgpr {vgpr}
  .amdhsa_next_free_sgpr {sgpr}
  .amdhsa_accum_offset {vgpr}
  .amdhsa_group_segment_fixed_size 0
  .amdhsa_kernarg_size 136
  .amdhsa_user_sgpr_count 2
  .amdhsa_user_sgpr_kernarg_segment_ptr 1
  .amdhsa_system_sgpr_workgroup_id_x 1
  .amdhsa_float_denorm_mode_32 3
.end_amdhsa_kernel
.text
"""


def head(e, name):
    e(f".globl {name}\n.p2align 8\n.type {name},@function\n{name}:")


DPP = "row_mask:0xf bank_mask:0xf"


def allreduce(e, v, t):
    e(f"s_nop 1\nv_add_f32 v{v}, v{v}, v{v} quad_perm:[1,0,3,2] {DPP}")
    e(f"s_nop 1\nv_add_f32 v{v}, v{v}, v{v} quad_perm:[2,3,0,1] {DPP}")
    e(f"s_nop 1\nv_add_f32 v{v}, v{v}, v{v} row_half_mirror {DPP}")
    e(f"s_nop 1\nv_add_f32 v{v}, v{v}, v{v} row_mirror {DPP}")
    e(f"v_mov_b32 v{t}, v{v}\ns_nop 1\nv_permlane16_swap_b32 v{t}, v{v}\ns_nop 1\nv_add_f32 v{v}, v{v}, v{t}")
    e(f"v_mov_b32 v{t}, v{v}\ns_nop 1\nv_permlane32_swap_b32 v{t}, v{v}\ns_nop 1\nv_add_f32 v{v}, v{v}, v{t}")


def rbf(e, v):
    e(f"v_cvt_pk_bf16_f32 v{v}, v{v}, v{v}\nv_lshlrev_b32 v{v}, 16, v{v}")


def gen_ln(e):
    name = "ln_kernel"
    head(e, name)
    e("s_cmp_ge_u32 s2, 256\ns_cbranch_scc1 L_ln_end")
    e(f"s_load_dwordx2 s[4:5], s[0:1], {KA['x']}\ns_load_dwordx2 s[6:7], s[0:1], {KA['ws']}")
    e(f"s_load_dwordx4 s[40:43], s[0:1], {KA['lre']}\ns_load_dwordx2 s[44:45], s[0:1], {KA['ldt']}")
    e("v_lshrrev_b32 v2, 6, v0\nv_and_b32 v1, 63, v0\nv_readfirstlane_b32 s20, v2\nv_lshlrev_b32 v2, 4, v1")
    e("s_waitcnt lgkmcnt(0)")
    srd(e, 8, 4, 5, 0, 4 * MB)
    srd(e, 12, 6, 7, WS_XN, 4 * MB)
    srd(e, 16, 6, 7, WS_HH, 4 * MB)
    e("s_lshl_b32 s21, s2, 3\ns_add_u32 s21, s21, s20\ns_lshl_b32 s21, s21, 11")
    e("buffer_load_dwordx4 v[8:11], v2, s[8:11], s21 offen\nbuffer_load_dwordx4 v[12:15], v2, s[8:11], s21 offen offset:1024")
    e("s_mov_b32 s22, 0xffff0000")
    e("s_waitcnt vmcnt(0)")
    F = 16
    for i in range(8):
        e(f"v_lshlrev_b32 v{F+2*i}, 16, v{8+i}\nv_and_b32 v{F+2*i+1}, s22, v{8+i}")

    def ln_pass(out):
        S, T, M, Q = 32, 33, 34, 35
        e(f"v_add_f32 v{S}, v{F}, v{F+1}")
        for i in range(2, 16):
            e(f"v_add_f32 v{S}, v{S}, v{F+i}")
        allreduce(e, S, T)
        e(f"v_mul_f32 v{M}, 0x{f2u(1/1024):x}, v{S}")
        e(f"v_sub_f32 v{T}, v{F}, v{M}\nv_mul_f32 v{Q}, v{T}, v{T}")
        for i in range(1, 16):
            e(f"v_sub_f32 v{T}, v{F+i}, v{M}\nv_fmac_f32 v{Q}, v{T}, v{T}")
        allreduce(e, Q, T)
        e(f"v_mul_f32 v{Q}, 0x{f2u(1/1024):x}, v{Q}")
        rbf(e, Q)
        e(f"v_add_f32 v{Q}, 0x{f2u(1e-5):x}, v{Q}")
        rbf(e, Q)
        e(f"v_sqrt_f32 v{Q}, v{Q}\ns_nop 0")
        rbf(e, Q)
        e(f"v_rcp_f32 v{Q}, v{Q}")
        rbf(e, M)
        for i in range(8):
            a, b = F + 2 * i, F + 2 * i + 1
            e(f"v_sub_f32 v{a}, v{a}, v{M}\nv_sub_f32 v{b}, v{b}, v{M}\nv_cvt_pk_bf16_f32 v{T}, v{a}, v{b}")
            e(f"v_lshlrev_b32 v{a}, 16, v{T}\nv_and_b32 v{b}, s22, v{T}")
            e(f"v_mul_f32 v{a}, v{a}, v{Q}\nv_mul_f32 v{b}, v{b}, v{Q}\nv_cvt_pk_bf16_f32 v{out+i}, v{a}, v{b}")
            e(f"v_lshlrev_b32 v{a}, 16, v{out+i}\nv_and_b32 v{b}, s22, v{out+i}")

    ln_pass(40)
    e("buffer_store_dwordx4 v[40:43], v2, s[12:15], s21 offen\nbuffer_store_dwordx4 v[44:47], v2, s[12:15], s21 offen offset:1024")
    ln_pass(48)
    e("s_lshl_b32 s23, s20, 11\nv_add_u32 v3, s23, v2")
    e("ds_write_b128 v3, v[48:51]\nds_write_b128 v3, v[52:55] offset:1024")
    e("s_waitcnt lgkmcnt(0)\ns_barrier")
    e("v_lshlrev_b32 v3, 2, v0")
    for r in range(8):
        e(f"ds_read_b32 v{56+r}, v3 offset:{r*2048}")
    e("s_mov_b32 s24, 0x05040100\ns_mov_b32 s25, 0x07060302")
    e("s_waitcnt lgkmcnt(0)")
    for i in range(4):
        e(f"v_perm_b32 v{64+i}, v{57+2*i}, v{56+2*i}, s24\nv_perm_b32 v{68+i}, v{57+2*i}, v{56+2*i}, s25")
    e("v_lshlrev_b32 v3, 5, v0\ns_lshl_b32 s23, s2, 14")
    e("buffer_store_dwordx4 v[64:67], v3, s[16:19], s23 offen\nbuffer_store_dwordx4 v[68:71], v3, s[16:19], s23 offen offset:16")
    e("s_cmp_eq_u32 s2, 2\ns_cbranch_scc1 L_ln_flags")
    e("s_cmp_ge_u32 s2, 2\ns_cbranch_scc1 L_ln_end")
    srd(e, 24, 40, 41, 0, 2048)
    srd(e, 28, 42, 43, 0, 2048)
    srd(e, 32, 44, 45, 0, 2048)
    srd(e, 36, 6, 7, WS_TAB, 16384)
    e("s_lshl_b32 s23, s2, 9\nv_add_u32 v3, s23, v0\nv_lshlrev_b32 v4, 1, v3")
    e("buffer_load_ushort v8, v4, s[24:27], 0 offen\nbuffer_load_ushort v9, v4, s[28:31], 0 offen\nbuffer_load_ushort v10, v4, s[32:35], 0 offen")
    e("s_waitcnt vmcnt(0)")
    e("v_lshlrev_b32 v8, 16, v8\nv_lshlrev_b32 v9, 16, v9\nv_lshlrev_b32 v10, 16, v10")
    L2E = f"0x{f2u(math.log2(math.e)):x}"
    e(f"v_mul_f32 v10, {L2E}, v10\nv_exp_f32 v10, v10\ns_nop 0")
    rbf(e, 10)
    e("v_mul_f32 v11, v10, v8\nv_mul_f32 v12, v10, v9")
    e(f"v_mul_f32 v11, {L2E}, v11\nv_exp_f32 v11, v11")
    e(f"v_mul_f32 v12, 0x{f2u(1/(2*math.pi)):x}, v12\nv_rndne_f32 v13, v12\nv_sub_f32 v12, v12, v13")
    e("v_cos_f32 v13, v12\nv_sin_f32 v14, v12\ns_nop 0")
    e("v_mul_f32 v16, v11, v13\nv_mul_f32 v17, v11, v14")
    e("v_add_f32 v13, -1.0, v16")
    e("v_mul_f32 v14, v8, v8\nv_fmac_f32 v14, v9, v9\nv_rcp_f32 v14, v14")
    e("v_mul_f32 v18, v13, v8\nv_fmac_f32 v18, v17, v9")
    e("v_mul_f32 v19, v17, v8\nv_fma_f32 v19, -v13, v9, v19")
    e("v_add_f32 v14, v14, v14")
    e("v_mul_f32 v18, v18, v14\nv_mul_f32 v19, v19, v14")
    e("v_lshlrev_b32 v4, 4, v3")
    e("buffer_store_dwordx4 v[16:19], v4, s[36:39], 0 offen")
    e("s_branch L_ln_end")
    e("L_ln_flags:")
    srd(e, 24, 6, 7, WS_FLG1, 4096)
    srd(e, 28, 6, 7, WS_FLG2, 4096)
    e("v_mov_b32 v8, 0\nv_mov_b32 v9, 0\nv_lshlrev_b32 v4, 3, v0")
    e("buffer_store_dwordx2 v[8:9], v4, s[24:27], 0 offen\nbuffer_store_dwordx2 v[8:9], v4, s[28:31], 0 offen")
    e("L_ln_end:\ns_endpgm")
    e(kd(name, vgpr=72))


def ld_voff_kc(e, vd, s_row0, layout, ld_or_R, bcat=False, t0=2, t1=3, t2=4):
    e(f"v_lshrrev_b32 v{t0}, 3, v1\nv_and_b32 v{t1}, 7, v1\nv_lshrrev_b32 v{t2}, 4, v1\nv_xor_b32 v{t1}, v{t1}, v{t2}")
    if bcat:
        e(f"s_lshr_b32 s23, s21, 1\ns_lshl_b32 s23, s23, 5\ns_add_u32 s23, s23, s{s_row0}")
    else:
        e(f"s_lshl_b32 s23, s21, 5\ns_add_u32 s23, s23, s{s_row0}")
    e(f"v_add_u32 v{t0}, s23, v{t0}")
    for q in range(4):
        e(f"v_xor_b32 v{t2}, {4*(q&1)}, v{t1}\nv_add_u32 v{vd+q}, {8*q}, v{t0}")
        if layout == 'rm':
            e(f"s_mov_b32 s23, {ld_or_R}\nv_mul_lo_u32 v{vd+q}, v{vd+q}, s23\nv_lshl_add_u32 v{vd+q}, v{t2}, 4, v{vd+q}")
        else:
            e(f"s_mov_b32 s23, {ld_or_R*16}\nv_mul_lo_u32 v{t2}, v{t2}, s23\nv_lshl_add_u32 v{vd+q}, v{vd+q}, 4, v{t2}")


def ld_voff_ks(e, vd, s_n0, ld, t0=2, t1=3, t2=4):
    e(f"v_lshrrev_b32 v{t0}, 4, v1\nv_and_b32 v{t1}, 15, v1\nv_lshlrev_b32 v{t2}, 2, v{t0}\nv_xor_b32 v{t1}, v{t1}, v{t2}")
    e(f"s_lshl_b32 s23, s21, 4\nv_add_u32 v{t0}, s23, v{t0}")
    e(f"s_lshl_b32 s24, s{s_n0}, 1\nv_lshlrev_b32 v{t1}, 4, v{t1}\nv_add_u32 v{t1}, s24, v{t1}")
    e(f"s_mov_b32 s23, {ld}")
    for q in range(4):
        e(f"v_add_u32 v{vd+q}, {4*q}, v{t0}\nv_mul_lo_u32 v{vd+q}, v{vd+q}, s23\nv_add_u32 v{vd+q}, v{vd+q}, v{t1}")


def loader_program(e, stages):
    T = len(stages)

    def issue(j):
        sa, va, ka, sb, vb, kb = stages[j]
        slot = (j % NS) * STG
        e(f"s_mov_b32 s50, 0x{ka:x}\ns_mov_b32 s51, 0x{kb:x}")
        for q in range(4):
            e(f"s_add_u32 m0, s22, 0x{slot+q*1024:x}\ns_nop 0\nbuffer_load_dwordx4 v{va+q}, s[{sa}:{sa+3}], s50 offen lds")
        for q in range(4):
            e(f"s_add_u32 m0, s22, 0x{slot+16384+q*1024:x}\ns_nop 0\nbuffer_load_dwordx4 v{vb+q}, s[{sb}:{sb+3}], s51 offen lds")

    for j in range(min(NS - 1, T)):
        issue(j)
    for b in range(T):
        after = min(b + NS - 2, T - 1) - b
        e(f"s_waitcnt vmcnt({8*after})\ns_barrier")
        if b + NS - 1 < T:
            issue(b + NS - 1)


class Opnd:
    def __init__(s, mode, lds_off, vaddr, perm):
        s.mode, s.lds_off, s.vaddr, s.perm = mode, lds_off, vaddr, perm
        s.nreg = 4 if mode == 'KC' else 2
        s.nread = 2 if mode == 'KC' else 4


NWIN = (NS * STG + 65535) // 65536


def cw_addr(e, op, s_wx, t0=2, t1=3, t2=4, t3=5):
    va = op.vaddr
    if op.mode == 'KC':
        e(f"v_and_b32 v{t0}, 31, v1\nv_lshrrev_b32 v{t1}, 5, v1")
        if op.perm == 'scan':
            e(f"v_bfe_u32 v{t2}, v{t0}, 2, 1\nv_lshlrev_b32 v{t2}, 5, v{t2}\nv_lshrrev_b32 v{t3}, 3, v{t0}")
            e(f"v_lshl_add_u32 v{t2}, v{t3}, 2, v{t2}\nv_and_b32 v{t0}, 3, v{t0}\nv_add_u32 v{t0}, v{t0}, v{t2}")
        e(f"s_lshl_b32 s23, s{s_wx}, 6\nv_add_u32 v{t0}, s23, v{t0}")
        e(f"v_bfe_u32 v{t2}, v{t0}, 1, 3\nv_xor_b32 v{t1}, v{t1}, v{t2}\nv_lshlrev_b32 v{t1}, 4, v{t1}")
        e(f"v_lshl_add_u32 v{t0}, v{t0}, 7, v{t1}\nv_add_u32 v{va}, {op.lds_off}, v{t0}")
        for kk in range(1, 4):
            e(f"v_xor_b32 v{va+kk}, {kk<<5}, v{va}")
    else:
        e(f"v_bfe_u32 v{t0}, v1, 2, 2\nv_lshrrev_b32 v{t1}, 5, v1\nv_lshl_add_u32 v{t1}, v{t1}, 3, v{t0}\nv_lshlrev_b32 v{t1}, 8, v{t1}")
        if op.perm == 'nat':
            e(f"v_bfe_u32 v{t2}, v1, 4, 1\nv_lshlrev_b32 v{t2}, 5, v{t2}\nv_and_b32 v{t3}, 3, v1\nv_lshl_add_u32 v{t2}, v{t3}, 3, v{t2}")
        else:
            e(f"v_bfe_u32 v{t2}, v1, 4, 1\nv_lshlrev_b32 v{t2}, 5, v{t2}\nv_and_b32 v{t3}, 1, v1\nv_lshl_add_u32 v{t2}, v{t3}, 4, v{t2}")
            e(f"v_bfe_u32 v{t3}, v1, 1, 1\nv_lshl_add_u32 v{t2}, v{t3}, 3, v{t2}")
        e(f"v_add_u32 v{t1}, v{t1}, v{t2}\nv_add_u32 v{t1}, {op.lds_off}, v{t1}")
        for j in range(2):
            e(f"s_lshl_b32 s23, s{s_wx}, 1\ns_add_u32 s23, s23, {j}\nv_xor_b32 v{t2}, s23, v{t0}\nv_lshl_add_u32 v{va+j}, v{t2}, 6, v{t1}")
    for w in range(1, NWIN):
        for i in range(op.nreg):
            e(f"v_add_u32 v{va+w*op.nreg+i}, 0x{65536*w:x}, v{va+i}")


FR = 40


def frag_reads(op, slot, kk, dst):
    base = slot * STG
    win, off = base // 65536, base % 65536
    R = []
    for j in range(2):
        d = dst + 4 * j
        if op.mode == 'KC':
            jo = 2048 if op.perm == 'scan' else 4096
            R.append(f"ds_read_b128 v[{d}:{d+3}], v{op.vaddr+win*4+kk} offset:{off+j*jo}")
        else:
            for t in range(2):
                R.append(f"ds_read_b64_tr_b16 v[{d+2*t}:{d+2*t+1}], v{op.vaddr+win*2+j} offset:{off+kk*4096+t*1024}")
    return R


def compute_step(e, A, B, acc, slot, first):
    nr = A.nread + B.nread

    def reads(kk):
        d = FR + 16 * kk
        return frag_reads(A, slot, kk, d) + frag_reads(B, slot, kk, d + 8)

    def mfmas(kk):
        d = FR + 16 * kk
        M = []
        for j in range(2):
            for jn in range(2):
                a = acc + 32 * j + 16 * jn
                c = "0" if (first and kk == 0) else f"v[{a}:{a+15}]"
                M.append(f"v_mfma_f32_32x32x16_bf16 v[{a}:{a+15}], v[{d+4*j}:{d+4*j+3}], v[{d+8+4*jn}:{d+8+4*jn+3}], {c}")
        return M

    e("s_barrier")
    for r in reads(0) + reads(1):
        e(r)
    for kk in range(4):
        e(f"s_waitcnt lgkmcnt({nr if kk < 3 else 0})")
        M = mfmas(kk)
        R = reads(kk + 2) if kk < 2 else []
        per = (len(R) + 3) // 4
        for i in range(4):
            e(M[i])
            for r in R[i * per:(i + 1) * per]:
                e(r)


def common_start(e, nwg, endlab):
    e(f"s_cmp_ge_u32 s2, {nwg}\ns_cbranch_scc1 {endlab}")
    e("v_lshrrev_b32 v2, 6, v0\nv_and_b32 v1, 63, v0\nv_readfirstlane_b32 s20, v2")
    e("s_and_b32 s30, s2, 7\ns_lshr_b32 s31, s2, 3")


def cmul_sq(e, re, im, t):
    e(f"v_mul_f32 v{t}, v{re}, v{im}\nv_mul_f32 v{re}, v{re}, v{re}\nv_fma_f32 v{re}, -v{im}, v{im}, v{re}\nv_add_f32 v{im}, v{t}, v{t}")


def gen_p1(e):
    name = "p1_kernel"
    head(e, name)
    common_start(e, 256, "L_p1_end")
    e(f"s_load_dwordx4 s[4:7], s[0:1], {KA['bre']}\ns_load_dwordx4 s[8:11], s[0:1], {KA['w1']}\ns_load_dwordx2 s[12:13], s[0:1], {KA['ws']}")
    e("s_and_b32 s32, s30, 3\ns_lshl_b32 s32, s32, 2\ns_and_b32 s23, s31, 3\ns_add_u32 s32, s32, s23")
    e("s_lshr_b32 s33, s30, 2\ns_lshl_b32 s33, s33, 3\ns_lshr_b32 s23, s31, 2\ns_add_u32 s33, s33, s23")
    e("s_and_b32 s34, s30, 1\ns_lshl_b32 s34, s34, 2\ns_and_b32 s23, s31, 3\ns_add_u32 s34, s34, s23")
    e("s_lshr_b32 s35, s30, 1\ns_mul_i32 s35, s35, 7\ns_lshr_b32 s23, s31, 2\ns_add_u32 s35, s35, s23")
    e("s_lshl_b32 s36, s32, 7\ns_lshl_b32 s37, s33, 6\ns_lshl_b32 s38, s34, 7\ns_lshl_b32 s39, s35, 7")
    e("s_waitcnt lgkmcnt(0)")
    e("s_cmp_lt_u32 s20, 4\ns_cbranch_scc1 L_p1_compute")
    e("s_sub_u32 s21, s20, 4\ns_lshl_b32 s22, s21, 12")
    srd(e, 56, 12, 13, WS_XN, 4 * MB)
    e("s_and_b32 s23, s21, 1\ns_cmp_eq_u32 s23, 0\ns_cselect_b32 s60, s4, s6\ns_cselect_b32 s61, s5, s7")
    e(f"s_mov_b32 s62, 0x{2*MB:x}\ns_mov_b32 s63, 0x20000")
    srd(e, 64, 8, 9, 0, 2048 * 3584 * 2)
    srd(e, 68, 12, 13, WS_HH, 4 * MB)
    ld_voff_kc(e, 8, 36, 'rm', 2048)
    ld_voff_kc(e, 12, 37, 'rm', 2048, bcat=True)
    ld_voff_ks(e, 16, 39, 7168)
    ld_voff_kc(e, 20, 38, 'blk', 1024)
    st_bu = [(56, 8, k * 128, 60, 12, k * 128) for k in range(16)]
    st_m = [(64, 16, k * 64 * 7168, 68, 20, k * 8 * 1024 * 16) for k in range(32)]
    e("s_cmp_ge_u32 s31, 28\ns_cbranch_scc1 L_p1_ld_short")
    loader_program(e, st_bu + st_m)
    e("s_endpgm")
    e("L_p1_ld_short:")
    loader_program(e, st_bu)
    e("s_endpgm")
    e("L_p1_compute:")
    e("s_lshr_b32 s40, s20, 1\ns_and_b32 s41, s20, 1")
    srd(e, 56, 12, 13, WS_TAB, 16384)
    srd(e, 60, 12, 13, WS_AGG, 262144)
    srd(e, 64, 12, 13, WS_FLG1, 4096)
    srd(e, 68, 12, 13, WS_HP, 8 * MB)
    srd(e, 72, 12, 13, WS_U, 1024 * 3584 * 2)
    srd(e, 76, 10, 11, 0, 3584 * 2)
    e("v_and_b32 v2, 31, v1\ns_lshl_b32 s23, s41, 5\ns_add_u32 s23, s23, s37\nv_add_u32 v6, s23, v2\nv_lshlrev_b32 v2, 4, v6")
    e("buffer_load_dwordx4 v[8:11], v2, s[56:59], 0 offen")
    A = Opnd('KC', 0, 16, 'scan')
    B = Opnd('KC', 16384, 16 + 4 * NWIN, 'nat')
    cw_addr(e, A, 40)
    cw_addr(e, B, 41)
    ACB, ACM = 128, 192
    for k in range(16):
        compute_step(e, A, B, ACB, k % NS, k == 0)
    e("s_nop 15\ns_waitcnt vmcnt(0)")
    gre = lambda t: ACB + 32 * (t >> 4) + (t & 15)
    gim = lambda t: gre(t) + 16
    AR, AI, CR, CI = 8, 9, 10, 11
    er, ei, nr, ni = 104, 105, 106, 107
    e(f"v_mov_b32 v{er}, v{gre(0)}\nv_mov_b32 v{ei}, v{gim(0)}")
    for t in range(1, 32):
        e(f"v_fma_f32 v{nr}, v{AR}, v{er}, v{gre(t)}\nv_fma_f32 v{ni}, v{AR}, v{ei}, v{gim(t)}")
        e(f"v_fma_f32 v{nr}, -v{AI}, v{ei}, v{nr}\nv_fma_f32 v{ni}, v{AI}, v{er}, v{ni}")
        er, nr = nr, er
        ei, ni = ni, ei
    P32R, P32I = 12, 13
    e(f"v_mov_b32 v{P32R}, v{AR}\nv_mov_b32 v{P32I}, v{AI}")
    for _ in range(5):
        cmul_sq(e, P32R, P32I, 108)
    LOR, LOI = 14, 15
    e(f"v_mov_b32 v{LOR}, v{er}\nv_mov_b32 v{LOI}, v{ei}\ns_nop 1")
    e(f"v_permlane32_swap_b32 v{LOR}, v{er}\nv_permlane32_swap_b32 v{LOI}, v{ei}\ns_nop 1")
    e(f"v_fma_f32 v110, v{P32R}, v{LOR}, v{er}\nv_fma_f32 v111, v{P32R}, v{LOI}, v{ei}")
    e(f"v_fma_f32 v110, -v{P32I}, v{LOI}, v110\nv_fma_f32 v111, v{P32I}, v{LOR}, v111")
    e("s_lshl_b32 s42, s33, 1\ns_add_u32 s42, s42, s41\ns_lshl_b32 s43, s32, 1\ns_add_u32 s43, s43, s40")
    e("s_lshl_b32 s44, s42, 5\ns_add_u32 s45, s44, s43")
    e("v_and_b32 v2, 31, v1\nv_lshlrev_b32 v7, 3, v2")
    e("s_lshl_b32 s23, s45, 8")
    e("buffer_store_dwordx2 v[110:111], v7, s[60:63], s23 offen sc1")
    e("s_waitcnt vmcnt(0)")
    e("v_mov_b32 v2, 0\nv_mov_b32 v3, 1\ns_lshl_b32 s23, s45, 2")
    e("buffer_store_dword v3, v2, s[64:67], s23 offen sc1")
    e("s_cmp_ge_u32 s31, 28\ns_cbranch_scc1 L_p1_pass2")
    A2 = Opnd('KS', 0, 16, 'u8')
    B2 = Opnd('KC', 16384, 16 + 4 * NWIN, 'nat')
    cw_addr(e, A2, 40)
    cw_addr(e, B2, 41)
    e("v_lshrrev_b32 v2, 5, v1\nv_lshlrev_b32 v2, 4, v2\ns_lshl_b32 s23, s40, 6\ns_add_u32 s23, s23, s39\ns_lshl_b32 s23, s23, 1")
    for i in range(4):
        e(f"buffer_load_dwordx4 v[{112+4*i}:{115+4*i}], v2, s[76:79], s23 offen offset:{32*i}")
    for k in range(32):
        compute_step(e, A2, B2, ACM, (16 + k) % NS, k == 0)
    e("s_nop 15\ns_waitcnt vmcnt(0)")
    C0 = -2.0 * math.sqrt(2.0 / math.pi) * math.log2(math.e)
    e(f"s_mov_b32 s46, 0x{f2u(C0):x}\ns_mov_b32 s47, 0x{f2u(C0*0.044715):x}\ns_mov_b32 s48, 0xffff0000")
    e("v_mov_b32 v5, s46")
    e("v_and_b32 v2, 31, v1\nv_lshrrev_b32 v3, 5, v1\nv_lshlrev_b32 v3, 10, v3\nv_add_u32 v2, v2, v3\nv_lshlrev_b32 v2, 4, v2")
    e("s_lshl_b32 s23, s40, 6\ns_add_u32 s23, s23, s39\ns_lshl_b32 s23, s23, 7\ns_lshl_b32 s24, s41, 6\ns_add_u32 s24, s24, s38\ns_add_u32 s23, s23, s24\ns_lshl_b32 s49, s23, 4")
    T0 = 40
    for j in range(2):
        for s in range(2):
            bq = 112 + 4 * (2 * j + s)
            for i in range(4):
                e(f"v_lshlrev_b32 v{T0+16+2*i}, 16, v{bq+i}\nv_and_b32 v{T0+17+2*i}, s48, v{bq+i}")
            for jn in range(2):
                a = ACM + 32 * j + 16 * jn + 8 * s
                o = T0 + 24 + 4 * jn + 8 * (s & 1)
                for i in range(4):
                    x0, x1, t0, t1 = T0, T0 + 1, T0 + 2, T0 + 3
                    e(f"v_cvt_pk_bf16_f32 v{t0}, v{a+2*i}, v{a+2*i+1}\nv_lshlrev_b32 v{x0}, 16, v{t0}\nv_and_b32 v{x1}, s48, v{t0}")
                    e(f"v_add_f32 v{x0}, v{x0}, v{T0+16+2*i}\nv_add_f32 v{x1}, v{x1}, v{T0+17+2*i}")
                    e(f"v_cvt_pk_bf16_f32 v{t0}, v{x0}, v{x1}\nv_lshlrev_b32 v{x0}, 16, v{t0}\nv_and_b32 v{x1}, s48, v{t0}")
                    e(f"v_mul_f32 v{t0}, v{x0}, v{x0}\nv_mul_f32 v{t1}, v{x1}, v{x1}")
                    e(f"v_fma_f32 v{t0}, v{t0}, s47, v5\nv_fma_f32 v{t1}, v{t1}, s47, v5")
                    e(f"v_mul_f32 v{t0}, v{t0}, v{x0}\nv_mul_f32 v{t1}, v{t1}, v{x1}")
                    e(f"v_exp_f32 v{t0}, v{t0}\nv_exp_f32 v{t1}, v{t1}\ns_nop 0")
                    e(f"v_add_f32 v{t0}, 1.0, v{t0}\nv_add_f32 v{t1}, 1.0, v{t1}")
                    e(f"v_rcp_f32 v{t0}, v{t0}\nv_rcp_f32 v{t1}, v{t1}\ns_nop 0")
                    e(f"v_mul_f32 v{x0}, v{x0}, v{t0}\nv_mul_f32 v{x1}, v{x1}, v{t1}")
                    e(f"v_cvt_pk_bf16_f32 v{o+i}, v{x0}, v{x1}")
                e(f"s_add_u32 s23, s49, 0x{((4*j+2*s)*1024+32*jn)*16:x}")
                e(f"buffer_store_dwordx4 v[{o}:{o+3}], v2, s[72:75], s23 offen")
    e("L_p1_pass2:")
    e("v_and_b32 v2, 31, v1\nv_lshlrev_b32 v3, 2, v2\ns_lshl_b32 s23, s44, 2")
    e("s_mov_b32 s26, 0x40000")
    e("L_p1_poll:")
    e("buffer_load_dword v4, v3, s[64:67], s23 offen sc1\ns_waitcnt vmcnt(0)")
    e("v_cmp_gt_u32 s[24:25], s43, v2\nv_cmp_ne_u32 vcc, 1, v4\ns_nop 1\ns_and_b64 vcc, vcc, s[24:25]\ns_cbranch_vccz L_p1_go\ns_sleep 4\ns_sub_u32 s26, s26, 1\ns_cbranch_scc0 L_p1_poll")
    e("L_p1_go:")
    EA = 40
    e("s_lshl_b32 s23, s44, 8")
    for c in range(31):
        if c % 16 == 0 and c:
            e(f"s_add_u32 s23, s23, 4096")
        e(f"buffer_load_dwordx2 v[{EA+2*c}:{EA+2*c+1}], v7, s[60:63], s23 offen offset:{(c%16)*256} sc1")
    P64R, P64I = 108, 109
    e(f"v_mov_b32 v{P64R}, v{P32R}\nv_mov_b32 v{P64I}, v{P32I}")
    cmul_sq(e, P64R, P64I, 110)
    cr, ci, tr, ti = 104, 105, 106, 107
    e(f"v_mov_b32 v{cr}, 0\nv_mov_b32 v{ci}, 0")
    e("s_waitcnt vmcnt(0)")
    for c in range(31):
        e(f"s_cmp_le_u32 s43, {c}\ns_cbranch_scc1 L_p1_hdone")
        e(f"v_fma_f32 v{tr}, v{P64R}, v{cr}, v{EA+2*c}\nv_fma_f32 v{ti}, v{P64R}, v{ci}, v{EA+2*c+1}")
        e(f"v_fma_f32 v{tr}, -v{P64I}, v{ci}, v{tr}\nv_fma_f32 v{ci}, v{P64I}, v{cr}, v{ti}\nv_mov_b32 v{cr}, v{tr}")
    e("L_p1_hdone:")
    e(f"v_fma_f32 v{tr}, v{P32R}, v{cr}, v{LOR}\nv_fma_f32 v{ti}, v{P32R}, v{ci}, v{LOI}")
    e(f"v_fma_f32 v{tr}, -v{P32I}, v{ci}, v{tr}\nv_fma_f32 v{ti}, v{P32I}, v{cr}, v{ti}")
    e(f"v_cmp_lt_u32 vcc, 31, v1\ns_nop 1\nv_cndmask_b32 v{cr}, v{cr}, v{tr}, vcc\nv_cndmask_b32 v{ci}, v{ci}, v{ti}, vcc")
    gr, gi, nr, ni = cr, ci, tr, ti
    for t in range(32):
        e(f"v_fma_f32 v{nr}, v{AR}, v{gr}, v{gre(t)}\nv_fma_f32 v{ni}, v{AR}, v{gi}, v{gim(t)}")
        e(f"v_fma_f32 v{nr}, -v{AI}, v{gi}, v{nr}\nv_fma_f32 v{ni}, v{AI}, v{gr}, v{ni}")
        gr, nr = nr, gr
        gi, ni = ni, gi
        e(f"v_mul_f32 v{gre(t)}, v{CR}, v{gr}\nv_mul_f32 v{gim(t)}, v{CR}, v{gi}")
        e(f"v_fma_f32 v{gre(t)}, -v{CI}, v{gi}, v{gre(t)}\nv_fma_f32 v{gim(t)}, -v{CI}, v{gr}, -v{gim(t)}")
    OR, OI = 40, 56
    for t in range(0, 32, 2):
        e(f"v_cvt_pk_bf16_f32 v{OR+t//2}, v{gre(t)}, v{gre(t+1)}\nv_cvt_pk_bf16_f32 v{OI+t//2}, v{gim(t)}, v{gim(t+1)}")
    e("v_lshrrev_b32 v2, 5, v1\nv_lshlrev_b32 v2, 6, v2\nv_lshl_add_u32 v2, v6, 12, v2")
    e("s_lshl_b32 s23, s40, 6\ns_add_u32 s23, s23, s36\ns_lshl_b32 s23, s23, 1\ns_add_u32 s24, s23, 0x400000")
    for k in range(4):
        e(f"buffer_store_dwordx4 v[{OR+4*k}:{OR+4*k+3}], v2, s[68:71], s23 offen offset:{16*k}")
        e(f"buffer_store_dwordx4 v[{OI+4*k}:{OI+4*k+3}], v2, s[68:71], s24 offen offset:{16*k}")
    e("L_p1_end:\ns_endpgm")
    e(kd(name))


def gen_p2(e):
    name = "p2_kernel"
    head(e, name)
    common_start(e, 256, "L_p2_end")
    e(f"s_load_dwordx4 s[4:7], s[0:1], {KA['cre']}\ns_load_dwordx4 s[8:11], s[0:1], {KA['w2']}\ns_load_dwordx2 s[12:13], s[0:1], {KA['ws']}")
    e(f"s_load_dwordx2 s[14:15], s[0:1], {KA['x']}\ns_load_dwordx2 s[16:17], s[0:1], {KA['dsk']}\ns_load_dwordx2 s[18:19], s[0:1], {KA['out']}")
    e("s_and_b32 s32, s30, 1")
    e("s_bfe_u32 s33, s30, 0x10001\ns_lshl_b32 s33, s33, 3\ns_and_b32 s23, s31, 7\ns_add_u32 s33, s33, s23")
    e("s_lshr_b32 s34, s30, 2\ns_lshl_b32 s34, s34, 2\ns_lshr_b32 s23, s31, 3\ns_add_u32 s34, s34, s23")
    e("s_lshl_b32 s36, s33, 7\ns_lshl_b32 s38, s34, 7")
    e("s_waitcnt lgkmcnt(0)")
    e("s_cmp_lt_u32 s20, 4\ns_cbranch_scc1 L_p2_compute")
    e("s_sub_u32 s21, s20, 4\ns_lshl_b32 s22, s21, 12")
    srd(e, 56, 12, 13, WS_U, 1024 * 3584 * 2)
    srd(e, 60, 8, 9, 0, 3584 * 2048 * 2)
    srd(e, 64, 4, 5, 0, 2 * MB)
    srd(e, 68, 6, 7, 0, 2 * MB)
    srd(e, 72, 12, 13, WS_HP, 8 * MB)
    ld_voff_kc(e, 8, 38, 'blk', 1024)
    ld_voff_kc(e, 12, 38, 'rm', 2048)
    ld_voff_ks(e, 16, 36, 4096)
    stu = lambda k: (56, 8, k * 8 * 1024 * 16, 60, 16, k * 64 * 4096)
    e("s_cmp_eq_u32 s32, 1\ns_cbranch_scc1 L_p2_ld1")
    loader_program(e, [stu(k) for k in range(44)])
    e("s_endpgm")
    e("L_p2_ld1:")
    loader_program(e, [stu(k) for k in range(44, 56)]
                   + [(64, 12, k * 128, 72, 16, k * 64 * 4096) for k in range(16)]
                   + [(68, 12, k * 128, 72, 16, (16 + k) * 64 * 4096) for k in range(16)])
    e("s_endpgm")
    e("L_p2_compute:")
    e("s_lshr_b32 s40, s20, 1\ns_and_b32 s41, s20, 1")
    srd(e, 56, 12, 13, WS_XCH, 8 * MB)
    srd(e, 60, 12, 13, WS_FLG2, 4096)
    srd(e, 64, 14, 15, 0, 4 * MB)
    srd(e, 68, 12, 13, WS_XN, 4 * MB)
    srd(e, 72, 16, 17, 0, 2048)
    srd(e, 76, 10, 11, 0, 4096)
    srd(e, 80, 18, 19, 0, 8 * MB)
    A = Opnd('KC', 0, 16, 'scan')
    B = Opnd('KS', 16384, 16 + 4 * NWIN, 'nat')
    cw_addr(e, A, 40)
    cw_addr(e, B, 41)
    ACC = 128
    for k in range(44):
        compute_step(e, A, B, ACC, k % NS, k == 0)
    e("s_nop 15")
    e("s_lshl_b32 s42, s33, 3\ns_add_u32 s42, s42, s34")
    e("s_lshl_b32 s43, s42, 1\ns_add_u32 s44, s43, s32\ns_lshl_b32 s44, s44, 2\ns_add_u32 s44, s44, s20")
    e("s_xor_b32 s45, s44, 4")
    e("v_lshlrev_b32 v2, 4, v1")
    e("s_lshl_b32 s23, s44, 13")
    e("s_cmp_eq_u32 s32, 1\ns_cbranch_scc1 L_p2_x1")
    for kh in range(2):
        if kh == 1:
            e("L_p2_x1:")
        jn = 1 - kh
        for j in range(2):
            for q in range(4):
                a = ACC + 32 * j + 16 * jn + 4 * q
                off = (4 * j + q) * 1024
                if off == 4096:
                    e("s_add_u32 s23, s23, 4096")
                e(f"buffer_store_dwordx4 v[{a}:{a+3}], v2, s[56:59], s23 offen offset:{off%4096} sc1")
        for j in range(2):
            for r in range(16):
                e(f"v_mov_b32 v{192+16*j+r}, v{ACC+32*j+16*kh+r}")
        if kh == 0:
            e("s_branch L_p2_x2")
    e("L_p2_x2:")
    e("s_waitcnt vmcnt(0)")
    e("v_mov_b32 v3, 0\nv_mov_b32 v4, 1\ns_lshl_b32 s23, s44, 2")
    e("buffer_store_dword v4, v3, s[60:63], s23 offen sc1")
    e("v_and_b32 v4, 31, v1\ns_lshl_b32 s23, s41, 6\ns_add_u32 s23, s23, s36\ns_lshl_b32 s24, s32, 5\ns_add_u32 s23, s23, s24\nv_add_u32 v4, s23, v4")
    e("v_lshrrev_b32 v5, 5, v1\nv_lshlrev_b32 v5, 5, v5\ns_lshl_b32 s23, s40, 6\ns_add_u32 s23, s23, s38\nv_add_u32 v5, s23, v5")
    e("v_lshl_add_u32 v6, v4, 10, v5\nv_lshlrev_b32 v7, 1, v6\nv_lshlrev_b32 v6, 2, v6\nv_lshlrev_b32 v5, 1, v5\nv_lshlrev_b32 v4, 1, v4")
    for k in range(4):
        e(f"buffer_load_dwordx4 v[{40+4*k}:{43+4*k}], v7, s[64:67], 0 offen offset:{16*k}")
        e(f"buffer_load_dwordx4 v[{56+4*k}:{59+4*k}], v7, s[68:71], 0 offen offset:{16*k}")
        e(f"buffer_load_dwordx4 v[{72+4*k}:{75+4*k}], v5, s[72:75], 0 offen offset:{16*k}")
    e("buffer_load_ushort v8, v4, s[76:79], 0 offen")
    e("s_lshl_b32 s23, s45, 2")
    e("s_mov_b32 s26, 0x40000")
    e("L_p2_poll:")
    e("buffer_load_dword v9, v3, s[60:63], s23 offen sc1\ns_waitcnt vmcnt(0)")
    e("v_cmp_ne_u32 vcc, 1, v9\ns_cbranch_vccz L_p2_go\ns_sleep 2\ns_sub_u32 s26, s26, 1\ns_cbranch_scc0 L_p2_poll")
    e("L_p2_go:")
    e("s_lshl_b32 s23, s45, 13")
    for i in range(8):
        if i == 4:
            e("s_add_u32 s23, s23, 4096")
        e(f"buffer_load_dwordx4 v[{224+4*i}:{227+4*i}], v2, s[56:59], s23 offen offset:{(i%4)*1024} sc1")
    e("s_mov_b32 s48, 0xffff0000\nv_lshlrev_b32 v8, 16, v8")
    for i in range(16):
        e(f"v_lshlrev_b32 v10, 16, v{56+i}\nv_and_b32 v11, s48, v{56+i}\nv_lshlrev_b32 v12, 16, v{72+i}\nv_and_b32 v13, s48, v{72+i}")
        e(f"v_mul_f32 v10, v10, v12\nv_mul_f32 v11, v11, v13\nv_cvt_pk_bf16_f32 v10, v10, v11")
        e(f"v_lshlrev_b32 v12, 16, v{40+i}\nv_and_b32 v13, s48, v{40+i}\nv_and_b32 v11, s48, v10\nv_lshlrev_b32 v10, 16, v10")
        e(f"v_add_f32 v12, v12, v8\nv_add_f32 v13, v13, v8\nv_add_f32 v10, v10, v12\nv_add_f32 v11, v11, v13")
        e(f"v_add_f32 v{192+2*i}, v{192+2*i}, v10\nv_add_f32 v{193+2*i}, v{193+2*i}, v11")
    e("s_waitcnt vmcnt(0)")
    for i in range(32):
        e(f"v_add_f32 v{192+i}, v{192+i}, v{224+i}")
    for k in range(8):
        e(f"buffer_store_dwordx4 v[{192+4*k}:{195+4*k}], v6, s[80:83], 0 offen offset:{16*k}")
    e("L_p2_end:\ns_endpgm")
    e(kd(name))


def main(path):
    ref = open(f"cdna_kernels/{NAME}.s.ref").read().splitlines()
    hdr = [l for l in ref if l.startswith(";") and "@launch" not in l and "Override" not in l and "grid=ceil" not in l]
    hdr = hdr[:18]
    e = E()
    gen_ln(e)
    gen_p1(e)
    gen_p2(e)
    lds = NS * STG
    out = "\n".join(hdr) + "\n"
    out += "; @launch kernel=ln_kernel grid=(256,1,1) block=(512,1,1) lds=16384\n"
    out += f"; @launch kernel=p1_kernel grid=(256,1,1) block=(512,1,1) lds={lds}\n"
    out += f"; @launch kernel=p2_kernel grid=(256,1,1) block=(512,1,1) lds={lds}\n"
    out += '.amdgcn_target "amdgcn-amd-amdhsa--gfx950"\n.text\n'
    out += "\n".join(e.L) + "\n"
    open(path, "w").write(out)


if __name__ == "__main__":
    main(sys.argv[1] if len(sys.argv) > 1 else f"cdna_kernels/{NAME}.s")
```

```python
import sys, math
def gen(name, TM, TN, K, lda, ldb, nwaves, depth, mt_x, nt_x, MT, NT, splitk=1, stagm=0, stagn=0, BK=64, loadA=True, loadB=True, kwrap=None, nobar=False, reps=1):
    L=[]
    a=L.append
    nA = TM*BK*2//1024; nB = TN*BK*2//1024
    per_wave_A = nA//nwaves; per_wave_B = nB//nwaves
    assert per_wave_A*nwaves==nA and per_wave_B*nwaves==nB
    stage_bytes=(nA+nB)*1024
    nst = depth+1
    lds = stage_bytes*nst
    assert lds<=160*1024, lds
    ksteps = K//BK//splitk
    a(f".p2align 8\n{name}:")
    a("s_cmp_ge_u32 s2, 256\ns_cbranch_scc1 L_end_%s"%name)
    a("s_load_dwordx4 s[4:7], s[0:1], 0")
    a("v_lshrrev_b32 v2, 6, v0\ns_nop 0\nv_readfirstlane_b32 s20, v2")
    a("v_and_b32 v1, 63, v0")
    a("s_and_b32 s21, s2, 7\ns_lshr_b32 s22, s2, 3")
    xm = MT//mt_x; xn = NT//nt_x
    lxm=int(math.log2(xm)); lxn=int(math.log2(xn))
    a(f"s_and_b32 s23, s21, {xm-1}\ns_lshr_b32 s24, s21, {lxm}\ns_and_b32 s25, s24, {xn-1}\ns_lshr_b32 s26, s24, {lxn}")
    xs = 8//(xm*xn); ins = splitk//xs
    assert mt_x*nt_x*ins==32
    lm=int(math.log2(mt_x)); ln=int(math.log2(nt_x))
    a(f"s_and_b32 s27, s22, {mt_x-1}\ns_lshr_b32 s28, s22, {lm}\ns_and_b32 s29, s28, {nt_x-1}\ns_lshr_b32 s30, s28, {ln}")
    a(f"s_mul_i32 s50, s27, {stagm}\ns_mul_i32 s51, s29, {stagn}\ns_add_u32 s50, s50, s51")
    a(f"s_mul_i32 s23, s23, {mt_x}\ns_add_u32 s23, s23, s27")
    a(f"s_mul_i32 s25, s25, {nt_x}\ns_add_u32 s25, s25, s29")
    a(f"s_mul_i32 s26, s26, {ins}\ns_add_u32 s26, s26, s30")
    a("s_waitcnt lgkmcnt(0)")
    a("s_mov_b32 s8, s4\ns_mov_b32 s9, s5\ns_mov_b32 s10, 0x%x\ns_mov_b32 s11, 0x20000"%(MT*TM*lda))
    a("s_mov_b32 s12, s6\ns_mov_b32 s13, s7\ns_mov_b32 s14, 0x%x\ns_mov_b32 s15, 0x20000"%(K*ldb))
    cpr = BK*2//16; rpiA=64//cpr
    a(f"v_lshrrev_b32 v3, {int(math.log2(cpr))}, v1\nv_and_b32 v4, {cpr-1}, v1\nv_lshlrev_b32 v4, 4, v4")
    a(f"s_mul_i32 s31, s20, {per_wave_A*rpiA}\ns_mul_i32 s32, s23, {TM}\ns_add_u32 s31, s31, s32")
    a(f"v_add_u32 v3, s31, v3\ns_mov_b32 s33, {lda}\nv_mul_lo_u32 v3, v3, s33\nv_add_u32 v10, v3, v4")
    a(f"s_mul_i32 s52, s26, {ksteps*BK*2}")
    lpr = TN*2//16; rpi = 64//lpr
    llpr=int(math.log2(lpr))
    a(f"v_lshrrev_b32 v3, {llpr}, v1\nv_and_b32 v4, {lpr-1}, v1\nv_lshlrev_b32 v4, 4, v4")
    a(f"s_mul_i32 s31, s20, {per_wave_B*rpi}\nv_add_u32 v3, s31, v3\ns_mov_b32 s33, {ldb}\nv_mul_lo_u32 v3, v3, s33\nv_add_u32 v11, v3, v4")
    a(f"s_mul_i32 s32, s25, {TN*2}\nv_add_u32 v11, s32, v11")
    a(f"s_mul_i32 s53, s26, {ksteps*BK*ldb}")
    a(f"s_mul_i32 s42, s20, {(per_wave_A+per_wave_B)*1024}")
    a("s_mov_b32 s43, 0")
    a(f"s_mov_b32 s44, {ksteps*reps}")
    a(f"L_loop_{name}:")
    a(f"s_mul_i32 s40, s50, {BK*2}\ns_add_u32 s40, s40, s52\ns_mul_i32 s41, s50, {BK*ldb}\ns_add_u32 s41, s41, s53")
    a("s_add_u32 s45, s42, s43")
    cnt=0
    if loadA:
      for i in range(per_wave_A):
        a(f"s_add_u32 m0, s45, {i*1024}\ns_add_u32 s46, s40, {i*rpiA*lda}")
        a(f"buffer_load_dwordx4 v10, s[8:11], s46 offen lds"); cnt+=1
    if loadB:
      for i in range(per_wave_B):
        a(f"s_add_u32 m0, s45, {(per_wave_A+i)*1024}\ns_add_u32 s46, s41, {i*rpi*ldb}")
        a(f"buffer_load_dwordx4 v11, s[12:15], s46 offen lds"); cnt+=1
    a(f"s_add_u32 s50, s50, 1\ns_cmp_ge_u32 s50, {kwrap or ksteps}\ns_cselect_b32 s50, 0, s50")
    a(f"s_add_u32 s43, s43, {stage_bytes}\ns_cmp_ge_u32 s43, {lds}\ns_cselect_b32 s43, 0, s43")
    n = min(63,cnt*depth)
    a(f"s_waitcnt vmcnt({n})")
    if not nobar: a("s_barrier")
    a(f"s_sub_u32 s44, s44, 1\ns_cmp_lg_u32 s44, 0\ns_cbranch_scc1 L_loop_{name}")
    a("s_waitcnt vmcnt(0)")
    a(f"L_end_{name}:\ns_endpgm")
    kd=f""".section .rodata,"a"
.p2align 6
.amdhsa_kernel {name}
  .amdhsa_next_free_vgpr 64
  .amdhsa_next_free_sgpr 96
  .amdhsa_accum_offset 64
  .amdhsa_group_segment_fixed_size 0
  .amdhsa_kernarg_size 40
  .amdhsa_user_sgpr_count 2
  .amdhsa_user_sgpr_kernarg_segment_ptr 1
  .amdhsa_system_sgpr_workgroup_id_x 1
.end_amdhsa_kernel
.text
"""
    hdr=f"; @launch kernel={name} grid=(256,1,1) block=({nwaves*64},1,1) lds={lds}\n"
    body="\n".join(L)+"\n"+kd
    byts=256*((TM if loadA else 0)+(TN if loadB else 0))*K*2//splitk*reps
    return hdr, body, byts

if __name__=="__main__":
    cfgs=[]
    K=5632; lda=K*2; ldb=4096
    base=dict(TM=64,TN=128,K=K,lda=lda,ldb=ldb,nwaves=4,depth=3,mt_x=8,nt_x=4,MT=16,NT=16)
    def add(name,**kw):
        d=dict(base); d.update(kw); cfgs.append((name+"_kernel",d))
    add("d_base",reps=4)
    add("d_wrap8",kwrap=8,reps=4)
    add("d_wrap16",kwrap=16,reps=4)
    add("d_wrap8_nobar",kwrap=8,nobar=True,reps=4)
    add("d_nobar",nobar=True,reps=4)
    add("d_wrap8_onlyA",kwrap=8,loadB=False,reps=4)
    add("d_wrap8_onlyB",kwrap=8,loadA=False,reps=4)
    add("d_wrap8_onlyB_pad",kwrap=8,loadA=False,reps=4,ldb=4096+128)
    add("d_wrap8_onlyA_pad",kwrap=8,loadB=False,reps=4,lda=lda+128)
    add("d_wrap8_stag",kwrap=8,stagm=1,reps=4)
    add("d_wrap8_onlyB_n16",kwrap=8,loadA=False,mt_x=2,nt_x=16,reps=4)
    add("d_wrap8_onlyA_m16",kwrap=8,loadB=False,mt_x=16,nt_x=2,reps=4)
    add("d_wrap8_d5",kwrap=8,depth=5,reps=4)
    add("d_d5",depth=5,reps=4)
    add("d_pad",lda=lda+128,ldb=4096+128,reps=4)
    add("d_stag4",stagm=4,stagn=0,reps=4)
    add("d_stag44",stagm=2,stagn=4,reps=4)
    out=[]
    for n,d in cfgs:
        hdr,body,byts=gen(n,**d)
        open(f"mb_{n}.s","w").write(hdr+'.amdgcn_target "amdgcn-amd-amdhsa--gfx950"\n.text\n'+body)
        out.append(f"{n} {byts}")
    open("mb_list5.txt","w").write("\n".join(out))
```

```python
from mb_dma5 import gen
cfgs=[]
K=5632; lda=K*2; ldb=4096
base=dict(TM=128,TN=128,K=K,lda=lda,ldb=ldb,nwaves=4,depth=3,mt_x=4,nt_x=8,MT=8,NT=16,splitk=2,reps=4)
def add(name,**kw):
    d=dict(base); d.update(kw); cfgs.append((name+"_kernel",d))
add("e_base")
add("e_d4",depth=4)
add("e_d2",depth=2)
add("e_w8",kwrap=8)
add("e_w8_d4",kwrap=8,depth=4)
add("e_w8_d2",kwrap=8,depth=2)
add("e_w8_d1",kwrap=8,depth=1)
add("e_w8_8w",kwrap=8,nwaves=8)
add("e_8w",nwaves=8)
add("e_8w_d4",nwaves=8,depth=4)
add("e_stag11_5",stagm=11,stagn=0)
add("e_stag0_5",stagm=0,stagn=5)
add("e_stag1_1",stagm=1,stagn=1)
add("e_stag2_1",stagm=2,stagn=1)
add("e_w8_onlyA",kwrap=8,loadB=False)
add("e_w8_onlyB",kwrap=8,loadA=False)
add("e_onlyA",loadB=False)
add("e_onlyB",loadA=False)
add("e_w1",kwrap=1)
add("e_w8_nobar",kwrap=8,nobar=True)
add("e_nobar",nobar=True)
out=[]
for n,d in cfgs:
    hdr,body,byts=gen(n,**d)
    open(f"mb_{n}.s","w").write(hdr+'.amdgcn_target "amdgcn-amd-amdhsa--gfx950"\n.text\n'+body)
    out.append(f"{n} {byts}")
open("mb_list6.txt","w").write("\n".join(out))
```

```python
import sys, struct, math, os

NAME = "parallel_sum__ssm_conv_s5__mixer_token_mlp__prompt"
MB = 1 << 20
WS_XN, WS_HH, WS_U, WS_HP = 0, 4 * MB, 8 * MB, 16 * MB
WS_ST = 24 * MB
WS_AGG = 24 * MB + 131072
WS_FLG = 25 * MB
F_AGG, F_H, F_U, F_X = 0, 4096, 8192, 12288
WS_XCH = 32 * MB
WS_TS = 48 * MB

NS = int(os.environ.get("NS", 4))
STG = 32768
KO = int(os.environ.get("KO", 32))
BUD = int(os.environ.get("BUD", 16))
BUDG = int(os.environ.get("BUDG", 24))
OPT = set(os.environ.get("OPT", "").split(","))
SLP = int(os.environ.get("SLP", 8))
TMO = 0x8000
LNL = NS * STG
VPV, VPO = 38, 39
ARR = int(os.environ.get("ARR", 4))
SKA = int(os.environ.get("SKA", 3))
SKB = int(os.environ.get("SKB", 2))
NPF = 0 if ("nopf" in OPT or "pfc" not in OPT) else 14
LGAP = int(os.environ.get("LGAP", 1))
NTS_ = int(os.environ.get("NTS", 18))
PFS = int(os.environ.get("PFS", 24))

P = dict(x=4, lre=6, lim=8, bre=10, bim=12, cre=14, cim=16, ldt=18, dsk=20, w1=24, b1=26, w2=28, b2=30,
         out=32, dbg=34, ws=36)
S_WAVE, S_XCD, S_IDX = 38, 39, 40
S_LT, S_PT, S_DT1, S_FT, S_KH, S_ST, S_DT2 = 41, 42, 43, 44, 45, 46, 47
T0, T1, T2, T3 = 48, 49, 50, 51
S_CNT, S_SLOT, S_A, S_B = 52, 53, 54, 55
ACB, ACM = 128, 192
AR, AI, CR, CI = 8, 9, 10, 11
P32R, P32I, P64R, P64I, PKR, PKI = 12, 13, 14, 15, 30, 31
LOR, LOI = 32, 33
VP, VC8 = 6, 7
S_G32, S_CH = 79, 80
S_FA, S_FHo, S_FUo, S_FXo, S_FXr = 76, 77, 78, 3, 54
SR_AGG, SR_FLG, SR_HP, SR_U, SR_B1, SR_DBG = 56, 60, 64, 68, 72, 84
S_WM, S_WN = 22, 23


def f2u(x):
    return struct.unpack('<I', struct.pack('<f', x))[0]


class E:
    def __init__(s):
        s.L = []
        s.n = 0

    def __call__(s, t):
        s.L.append(t)

    def lab(s, p="L"):
        s.n += 1
        return f"{p}_{s.n}"


def srd_s(sd, ptr, off, size):
    lo = P[ptr] if isinstance(ptr, str) else ptr
    if off:
        t = f"s_add_u32 s{sd}, s{lo}, 0x{off:x}\ns_addc_u32 s{sd+1}, s{lo+1}, 0\n"
    else:
        t = f"s_mov_b32 s{sd}, s{lo}\ns_mov_b32 s{sd+1}, s{lo+1}\n"
    return t + f"s_mov_b32 s{sd+2}, 0x{size:x}\ns_mov_b32 s{sd+3}, 0x20000"


def srd(e, sd, ptr, off, size):
    e(srd_s(sd, ptr, off, size))


DPP = "row_mask:0xf bank_mask:0xf"
NTS = [0]


def ts(e):
    if "ts" in OPT:
        assert NTS[0] < 10
        e(f"{'s_memrealtime' if 'tr' in OPT else 's_memtime'} s[88:89]\ns_waitcnt lgkmcnt(0)\ns_mov_b32 s{90+NTS[0]}, s88")
        NTS[0] += 1


def rts(e, n):
    if "ts" in OPT:
        e(f"s_memrealtime s[88:89]\ns_waitcnt lgkmcnt(0)\ns_mov_b32 s{100+n}, s88")


def ts_store(e):
    if "ts" in OPT:
        e("s_waitcnt vmcnt(0)")
        rts(e, 1)
        srd(e, 60, 'ws', WS_TS, MB)
        e(f"s_lshl_b32 s{T0}, s2, 3\ns_add_u32 s{T0}, s{T0}, s{S_WAVE}\ns_lshl_b32 s{T0}, s{T0}, 6\nv_mov_b32 v2, 0")
        for i in range(10):
            e(f"v_mov_b32 v3, s{90+i}\nbuffer_store_dword v3, v2, s[60:63], s{T0} offen offset:{4*i}")
        for i in range(2):
            e(f"v_mov_b32 v3, s{100+i}\nbuffer_store_dword v3, v2, s[60:63], s{T0} offen offset:{56+4*i}")


def rbf(v):
    return f"v_cvt_pk_bf16_f32 v{v}, v{v}, v{v}\nv_lshlrev_b32 v{v}, 16, v{v}"


def zipemit(e, streams):
    ls = [("\n".join(s)).split("\n") for s in streams]
    n = max(len(x) for x in ls)
    for i in range(n):
        for x in ls:
            if i < len(x):
                e(x[i])


def ln_rows(e):
    srd(e, 56, 'x', 0, 4 * MB)
    e(f"s_cmp_lt_u32 s2, 128\ns_cselect_b32 s60, s{P['bre']}, s{P['bim']}\ns_cselect_b32 s61, s{P['bre']+1}, s{P['bim']+1}")
    e(f"s_mov_b32 s62, 0x{2*MB:x}\ns_mov_b32 s63, 0x20000")
    e("v_lshlrev_b32 v2, 4, v1")
    e(f"s_lshl_b32 s{T0}, s2, 3\ns_lshl_b32 s{T1}, s{S_WAVE}, 1\ns_add_u32 s{T0}, s{T0}, s{T1}\ns_lshl_b32 s{T0}, s{T0}, 11")
    for r in range(2):
        b = 8 + 48 * r
        e(f"buffer_load_dwordx4 v[{b}:{b+3}], v2, s[56:59], s{T0} offen offset:{2048*r}")
        e(f"buffer_load_dwordx4 v[{b+4}:{b+7}], v2, s[56:59], s{T0} offen offset:{2048*r+1024}")
    flag_offsets(e)
    srd(e, 64, 'lre', 0, 2048)
    srd(e, 68, 'lim', 0, 2048)
    srd(e, 72, 'ldt', 0, 2048)
    e(f"v_and_b32 v3, 31, v1\nv_lshlrev_b32 v{VC8}, 3, v3\nv_add_u32 v{VP}, s{S_G32}, v3\nv_lshlrev_b32 v4, 1, v{VP}")
    e("buffer_load_ushort v100, v4, s[64:67], 0 offen\nbuffer_load_ushort v101, v4, s[68:71], 0 offen\nbuffer_load_ushort v102, v4, s[72:75], 0 offen")
    srd(e, 64, 'b2', 0, 4096)
    e(f"s_lshr_b32 s{T1}, s{T0}, 10\nv_mov_b32 v4, 0\nbuffer_load_dword v103, v4, s[64:67], s{T1} offen")
    e(f"s_and_b32 s{T1}, s{T0}, 0x{2*MB-1:x}")
    for i in range(4):
        e(f"buffer_load_dwordx4 v[{104+4*i}:{107+4*i}], v2, s[60:63], s{T1} offen offset:{1024*i}")
    srd(e, 68, 'ws', WS_FLG, 16384)
    e(f"v_mov_b32 v3, s{S_FHo}\nv_mov_b32 v4, s{S_FUo}\nv_cmp_eq_u32 vcc, 1, v1\nv_cndmask_b32 v3, v3, v4, vcc")
    e(f"v_mov_b32 v4, s{S_FXo}\nv_cmp_eq_u32 vcc, 2, v1\nv_cndmask_b32 v3, v3, v4, vcc")
    e(f"v_mov_b32 v4, s{S_FA}\nv_cmp_eq_u32 vcc, 3, v1\nv_cndmask_b32 v3, v3, v4, vcc\nv_mov_b32 v4, 0")
    e(f"s_mov_b64 exec, 15\nbuffer_store_dword v4, v3, s[68:71], 0 offen sc1\ns_mov_b64 exec, -1")
    srd(e, 64, 'ws', WS_HH, 4 * MB)
    srd(e, 68, 'ws', WS_ST, 65536)
    e(f"s_mov_b32 s{T1}, 0xffff0000")
    e("s_waitcnt vmcnt(9)")

    def allreduce(v, t):
        return [f"s_nop 1\nv_add_f32 v{v}, v{v}, v{v} quad_perm:[1,0,3,2] {DPP}",
                f"s_nop 1\nv_add_f32 v{v}, v{v}, v{v} quad_perm:[2,3,0,1] {DPP}",
                f"s_nop 1\nv_add_f32 v{v}, v{v}, v{v} row_half_mirror {DPP}",
                f"s_nop 1\nv_add_f32 v{v}, v{v}, v{v} row_mirror {DPP}",
                f"v_mov_b32 v{t}, v{v}\ns_nop 1\nv_permlane16_swap_b32 v{t}, v{v}\ns_nop 1\nv_add_f32 v{v}, v{v}, v{t}",
                f"v_mov_b32 v{t}, v{v}\ns_nop 1\nv_permlane32_swap_b32 v{t}, v{v}\ns_nop 1\nv_add_f32 v{v}, v{v}, v{t}"]

    def ln_pass(F, out, tmp):
        S, T, M, Q = tmp, tmp + 1, tmp + 2, tmp + 3
        L = [f"v_add_f32 v{S}, v{F}, v{F+1}"]
        L += [f"v_add_f32 v{S}, v{S}, v{F+i}" for i in range(2, 16)]
        L += allreduce(S, T)
        L += [f"v_mul_f32 v{M}, 0x{f2u(1/1024):x}, v{S}", f"v_sub_f32 v{T}, v{F}, v{M}\nv_mul_f32 v{Q}, v{T}, v{T}"]
        L += [f"v_sub_f32 v{T}, v{F+i}, v{M}\nv_fmac_f32 v{Q}, v{T}, v{T}" for i in range(1, 16)]
        L += allreduce(Q, T)
        L += [f"v_mul_f32 v{Q}, 0x{f2u(1/1024):x}, v{Q}", rbf(Q), f"v_add_f32 v{Q}, 0x{f2u(1e-5):x}, v{Q}", rbf(Q),
              f"v_sqrt_f32 v{Q}, v{Q}\ns_nop 0", rbf(Q), f"v_rcp_f32 v{Q}, v{Q}", rbf(M)]
        for i in range(8):
            a, b = F + 2 * i, F + 2 * i + 1
            L += [f"v_sub_f32 v{a}, v{a}, v{M}\nv_sub_f32 v{b}, v{b}, v{M}\nv_cvt_pk_bf16_f32 v{T}, v{a}, v{b}",
                  f"v_lshlrev_b32 v{a}, 16, v{T}\nv_and_b32 v{b}, s{T1}, v{T}",
                  f"v_mul_f32 v{a}, v{a}, v{Q}\nv_mul_f32 v{b}, v{b}, v{Q}\nv_cvt_pk_bf16_f32 v{out+i}, v{a}, v{b}",
                  f"v_lshlrev_b32 v{a}, 16, v{out+i}\nv_and_b32 v{b}, s{T1}, v{out+i}"]
        return L

    st = []
    for r in range(2):
        b = 8 + 48 * r
        F = b + 8
        L = [f"v_lshlrev_b32 v{F+2*i}, 16, v{b+i}\nv_and_b32 v{F+2*i+1}, s{T1}, v{b+i}" for i in range(8)]
        L += ln_pass(F, b + 24, b + 40)
        L += [f"v_mov_b32 v{120+r}, v{b+42}\nv_mov_b32 v{122+r}, v{b+43}"]
        L += ln_pass(F, b + 32, b + 40)
        L += [f"ds_write_b128 v3, v[{b+32}:{b+35}] offset:{2048*r}", f"ds_write_b128 v3, v[{b+36}:{b+39}] offset:{2048*r+1024}"]
        st.append(L)
    e(f"s_lshl_b32 s{T2}, s{S_WAVE}, 12\ns_add_u32 s{T2}, s{T2}, 0x{LNL:x}\nv_add_u32 v3, s{T2}, v2")
    zipemit(e, st)
    e("s_waitcnt vmcnt(1)")
    st = []
    for r in range(2):
        b, S, T = 104 + 8 * r, 124 + r, 8 + r
        L = [f"v_lshlrev_b32 v{S}, 16, v{b}\nv_and_b32 v{T}, s{T1}, v{b}\nv_add_f32 v{S}, v{S}, v{T}"]
        for i in range(1, 8):
            L += [f"v_lshlrev_b32 v{T}, 16, v{b+i}\nv_add_f32 v{S}, v{S}, v{T}\nv_and_b32 v{T}, s{T1}, v{b+i}\nv_add_f32 v{S}, v{S}, v{T}"]
        L += allreduce(S, T)
        st.append(L)
    zipemit(e, st)
    e(f"v_lshrrev_b32 v8, 16, v120\nv_lshl_or_b32 v8, v103, 16, v8\nv_lshrrev_b32 v9, 16, v121\nv_and_or_b32 v9, v103, s{T1}, v9")
    e(f"v_cmp_eq_u32 vcc, 1, v1\nv_cndmask_b32 v8, v8, v9, vcc\nv_cndmask_b32 v9, v122, v123, vcc")
    e(f"s_lshl_b32 s{T2}, s{S_WAVE}, 4\ns_add_u32 s{T2}, s{T2}, 0x{LNL+16384+128:x}\nv_lshlrev_b32 v4, 3, v1\nv_add_u32 v4, s{T2}, v4")
    e(f"s_mov_b64 exec, 3\nds_write_b64 v4, v[8:9]\ns_mov_b64 exec, -1")
    for i in range(1, 6):
        e(f"v_cmp_eq_u32 vcc, {i}, v1\nv_cndmask_b32 v120, v120, v{120+i}, vcc")
    e(f"v_lshrrev_b32 v4, 1, v1\nv_lshlrev_b32 v4, 5, v4\nv_and_b32 v5, 1, v1\nv_lshl_add_u32 v4, v5, 2, v4")
    e(f"s_lshl_b32 s{T2}, s{S_WAVE}, 3\ns_add_u32 s{T2}, s{T2}, 0x{LNL+16384:x}\nv_add_u32 v4, s{T2}, v4")
    e(f"s_mov_b64 exec, 63\nds_write_b32 v4, v120\ns_mov_b64 exec, -1")
    e("v_and_b32 v3, 0xc3, v0\nv_bfe_u32 v5, v0, 3, 2\nv_lshl_add_u32 v3, v5, 2, v3\nv_bfe_u32 v5, v0, 5, 1\nv_lshl_add_u32 v3, v5, 4, v3")
    e(f"v_bfe_u32 v5, v0, 2, 1\nv_lshl_add_u32 v3, v5, 5, v3\nv_lshlrev_b32 v3, 1, v3\nv_add_u32 v3, 0x{LNL:x}, v3")
    e(f"v_lshlrev_b32 v4, 2, v1\nv_add_u32 v5, 0x{LNL+16384:x}, v4")
    e("s_waitcnt lgkmcnt(0)\ns_barrier")
    for it in range(4):
        for i in range(4):
            e(f"ds_read_u16 v{8+4*it+i}, v3 offset:{2*i*2048+512*it}")
            e(f"ds_read_u16 v{24+4*it+i}, v3 offset:{(2*i+1)*2048+512*it}")
    e("ds_read_b32 v40, v5")
    e(f"s_lshl_b32 s{T0}, s2, 14\nv_lshlrev_b32 v3, 4, v0\ns_lshl_b32 s{T1}, s2, 8")
    for it in range(4):
        e(f"s_waitcnt lgkmcnt({min(15, 8*(3-it)+1)})")
        for i in range(4):
            e(f"v_lshl_or_b32 v{8+4*it+i}, v{24+4*it+i}, 16, v{8+4*it+i}")
        e(f"buffer_store_dwordx4 v[{8+4*it}:{11+4*it}], v3, s[64:67], s{T0} offen sc1\ns_add_u32 s{T0}, s{T0}, 4096")
    e("s_waitcnt lgkmcnt(0)")
    e(w0(e, f"buffer_store_dword v40, v4, s[68:71], s{T1} offen sc1"))
    if NPF:
        srd(e, 56, 'w1', 0, 2048 * 3584 * 2)
        e(f"s_lshl_b32 s{T3}, s2, 2\ns_add_u32 s{T3}, s{T3}, s{S_WAVE}\ns_lshl_b32 s{T3}, s{T3}, 10")
        for i in range(NPF):
            e(f"buffer_load_dwordx4 v[112:115], v2, s[56:59], s{T3} offen\ns_add_u32 s{T3}, s{T3}, 0x{MB:x}")
    srd(e, SR_DBG, 'dbg', 0, 256)
    e("v_lshlrev_b32 v48, 16, v100\nv_lshlrev_b32 v49, 16, v101\nv_lshlrev_b32 v50, 16, v102")
    L2E = f"0x{f2u(math.log2(math.e)):x}"
    e(f"v_mul_f32 v50, {L2E}, v50\nv_exp_f32 v50, v50\ns_nop 0")
    e(rbf(50))
    e("v_mul_f32 v51, v50, v48\nv_mul_f32 v52, v50, v49")
    e(f"v_mul_f32 v51, {L2E}, v51\nv_exp_f32 v51, v51")
    e(f"v_mul_f32 v52, 0x{f2u(1/(2*math.pi)):x}, v52\nv_rndne_f32 v53, v52\nv_sub_f32 v52, v52, v53")
    e("v_cos_f32 v53, v52\nv_sin_f32 v54, v52\ns_nop 0")
    e(f"v_mul_f32 v{AR}, v51, v53\nv_mul_f32 v{AI}, v51, v54")
    e(f"v_add_f32 v53, -1.0, v{AR}")
    e("v_mul_f32 v54, v48, v48\nv_fmac_f32 v54, v49, v49\nv_rcp_f32 v54, v54")
    e(f"v_mul_f32 v{CR}, v53, v48\nv_fmac_f32 v{CR}, v{AI}, v49")
    e(f"v_mul_f32 v{CI}, v{AI}, v48\nv_fma_f32 v{CI}, -v53, v49, v{CI}")
    e("v_add_f32 v54, v54, v54")
    e(f"v_mul_f32 v{CR}, v{CR}, v54\nv_mul_f32 v{CI}, v{CI}, v54")


def flag_offsets(e):
    e(f"s_lshl_b32 s{T0+2}, s{S_PT}, 1\ns_add_u32 s{T0+2}, s{T0+2}, s{S_WN}\ns_lshl_b32 s{S_G32}, s{T0+2}, 5")
    e(f"s_lshl_b32 s{S_CH}, s{S_LT}, 1\ns_add_u32 s{S_CH}, s{S_CH}, s{S_WM}")
    e(f"s_add_u32 s{S_FA}, s{S_G32}, s{S_CH}\ns_lshl_b32 s{S_FA}, s{S_FA}, 2\ns_add_u32 s{S_FA}, s{S_FA}, {F_AGG}")
    for d, hi, sh, lo, off in ((S_FHo, S_LT, 4, S_PT, F_H), (S_FUo, S_DT1, 5, S_FT, F_U), (S_FXo, S_ST, 3, S_DT2, F_X)):
        e(f"s_lshl_b32 s{d}, s{hi}, {sh}\ns_add_u32 s{d}, s{d}, s{lo}\ns_lshl_b32 s{d}, s{d}, 2\ns_add_u32 s{d}, s{d}, s{S_WAVE}\n"
          f"s_lshl_b32 s{d}, s{d}, 2\ns_add_u32 s{d}, s{d}, {off}")
    e(f"s_cmp_ge_u32 s{S_IDX}, 28\ns_cselect_b32 s{S_FUo}, s{S_FHo}, s{S_FUo}")
    e(f"s_cmp_eq_u32 s{S_KH}, 0\ns_cselect_b32 s{S_FXo}, s{S_FHo}, s{S_FXo}")


LW = 3


def ld_voff_kc(e, vd, s_row0, ld, bcat=False, scan=False, t0=2, t1=3, t2=4):
    e(f"v_lshrrev_b32 v{t0}, 3, v1\nv_and_b32 v{t1}, 7, v1\nv_lshrrev_b32 v{t2}, 4, v1\nv_xor_b32 v{t1}, v{t1}, v{t2}")
    if bcat:
        e(f"s_lshr_b32 s{T0}, s{LW}, 1\ns_lshl_b32 s{T0}, s{T0}, 5\ns_add_u32 s{T0}, s{T0}, s{s_row0}")
    else:
        e(f"s_lshl_b32 s{T0}, s{LW}, 5\ns_add_u32 s{T0}, s{T0}, s{s_row0}")
    e(f"v_add_u32 v{t0}, s{T0}, v{t0}")
    if scan:
        e(f"s_and_b32 s{T0}, s{LW}, 1\ns_lshl_b32 s{T0}, s{T0}, 2\nv_xor_b32 v{t1}, s{T0}, v{t1}")
    e(f"s_mov_b32 s{T0}, {ld}")
    for q in range(4):
        e(f"v_xor_b32 v{t2}, {0 if scan else 4*(q&1)}, v{t1}\nv_add_u32 v{vd+q}, {8*q}, v{t0}")
        e(f"v_mul_lo_u32 v{vd+q}, v{vd+q}, s{T0}\nv_lshl_add_u32 v{vd+q}, v{t2}, 4, v{vd+q}")
        if q:
            e(f"v_subrev_u32 v{vd+q}, {1024*q}, v{vd+q}")


def ld_voff_kb(e, vd, s_row0, R, t0=2):
    e(f"v_add_u32 v{t0}, s{s_row0}, v1\nv_lshlrev_b32 v{t0}, 4, v{t0}\ns_mul_i32 s{T0}, s{LW}, {2*R*16}\nv_add_u32 v{t0}, s{T0}, v{t0}")
    for q in range(4):
        e(f"v_add_u32 v{vd+q}, 0x{(q>>1)*R*16 + (q&1)*1024 + 4096 - q*1024:x}, v{t0}")


def ld_voff_kt(e, vd, s_tile, t0=2):
    e(f"s_lshl_b32 s{T0}, s{s_tile}, 14\ns_lshl_b32 s{T1}, s{LW}, 12\ns_add_u32 s{T0}, s{T0}, s{T1}")
    for q in range(4):
        e(f"v_xor_b32 v{t0}, {q<<2}, v1\nv_lshlrev_b32 v{t0}, 4, v{t0}\nv_add_u32 v{vd+q}, s{T0}, v{t0}")


def ld_voff_ks(e, vd, s_n0, ld, t0=2, t1=3, t2=4):
    e(f"v_lshrrev_b32 v{t0}, 4, v1\nv_and_b32 v{t1}, 15, v1\nv_lshlrev_b32 v{t2}, 2, v{t0}\nv_xor_b32 v{t1}, v{t1}, v{t2}")
    e(f"s_lshl_b32 s{T0}, s{LW}, 4\nv_add_u32 v{t0}, s{T0}, v{t0}")
    e(f"s_lshl_b32 s{T1}, s{s_n0}, 1\nv_lshlrev_b32 v{t1}, 4, v{t1}\nv_add_u32 v{t1}, s{T1}, v{t1}")
    e(f"s_mov_b32 s{T0}, {ld}")
    for q in range(4):
        e(f"v_add_u32 v{vd+q}, {4*q}, v{t0}\nv_mul_lo_u32 v{vd+q}, v{vd+q}, s{T0}\nv_add_u32 v{vd+q}, v{vd+q}, v{t1}")
        if q:
            e(f"v_subrev_u32 v{vd+q}, {1024*q}, v{vd+q}")


VA, VB = 8, 12
FH, FU = (16, 17), (18, 19)
S_M0B = 21


def ld_issue(e, dA, dB, flagld):
    if flagld:
        e(f"buffer_load_dword v{flagld[0]}, v{flagld[1]}, s[64:67], 0 offen sc1")
    if "nodma" not in OPT:
        e(f"s_mov_b32 m0, s{S_SLOT}\ns_add_u32 s{T0}, s{S_SLOT}, 16384")
        for q in range(4):
            e(f"buffer_load_dwordx4 v{VA+q}, s[56:59], s{S_A} offen offset:{q*1024} lds")
        e(f"s_mov_b32 m0, s{T0}\ns_nop 0")
        for q in range(4):
            e(f"buffer_load_dwordx4 v{VB+q}, s[60:63], s{S_B} offen offset:{q*1024} lds")
    e(f"s_add_u32 s{S_A}, s{S_A}, 0x{dA:x}\ns_add_u32 s{S_B}, s{S_B}, 0x{dB:x}")
    e(f"s_add_u32 s{S_SLOT}, s{S_SLOT}, {STG}\ns_cmp_ge_u32 s{S_SLOT}, {NS*STG}\ns_cselect_b32 s{S_SLOT}, s{S_M0B}, s{S_SLOT}")


def ld_check(e, nlanes_sgpr_or_int, fl):
    lp, ok = e.lab("Lfp"), e.lab("Lfo")
    n = nlanes_sgpr_or_int
    VF, VFO = fl
    e(f"s_mov_b32 s{T2}, {TMO}")
    e(f"v_cmp_gt_u32 s[{T0}:{T1}], {n}, v1")
    e(f"{lp}:\nv_cmp_ne_u32 vcc, 1, v{VF}\ns_nop 1\ns_and_b64 vcc, vcc, s[{T0}:{T1}]\ns_cbranch_vccz {ok}")
    e(f"s_sleep 1\nbuffer_load_dword v{VF}, v{VFO}, s[64:67], 0 offen sc1\ns_waitcnt vmcnt(0)")
    e(f"s_sub_u32 s{T2}, s{T2}, 1\ns_cbranch_scc0 {lp}\n{ok}:")


class Seg:
    def __init__(s, n, setup, dA, dB, flagld=None, pre=None):
        s.n, s.setup, s.dA, s.dB, s.flagld, s.pre = n, setup, dA, dB, flagld, pre


def loader_stream(e, segs, after_pro=None):
    hist = []

    def wait_cnt():
        return sum(hist[-(NS - 2):]) if NS > 2 else 0

    for i, sg in enumerate(segs):
        n = sg.n
        c = 9 if sg.flagld else 8
        if i == 0:
            sg.setup(e)
            if sg.pre:
                sg.pre(e)
            l = e.lab("Lld")
            e(f"s_mov_b32 s{S_CNT}, {NS-1}\n{l}:")
            ld_issue(e, sg.dA, sg.dB, sg.flagld)
            e(f"s_sub_u32 s{S_CNT}, s{S_CNT}, 1\ns_cmp_lg_u32 s{S_CNT}, 0\ns_cbranch_scc1 {l}")
            hist += [c] * (NS - 1)
            done = NS - 1
            if after_pro:
                e(after_pro)
        else:
            done = 0
            while done == 0 or (set(hist[-(NS - 2):]) != {c} and NS > 2):
                e(f"s_waitcnt vmcnt({wait_cnt()})\ns_barrier")
                if done == 0:
                    if sg.pre:
                        sg.pre(e)
                    sg.setup(e)
                ld_issue(e, sg.dA, sg.dB, sg.flagld)
                hist.append(c)
                done += 1
        l = e.lab("Lld")
        if isinstance(n, int):
            e(f"s_mov_b32 s{S_CNT}, {n-done}")
        else:
            e(f"s_sub_u32 s{S_CNT}, {n}, {done}")
        e(f"{l}:\ns_waitcnt vmcnt({wait_cnt()})\ns_barrier")
        ld_issue(e, sg.dA, sg.dB, sg.flagld)
        e(f"s_sub_u32 s{S_CNT}, s{S_CNT}, 1\ns_cmp_lg_u32 s{S_CNT}, 0\ns_cbranch_scc1 {l}")
        hist += [c] * (NS - 1)
    for r in range(NS - 2, -1, -1):
        e(f"s_waitcnt vmcnt({sum(hist[len(hist)-r:]) if r else 0})\ns_barrier")
    e("s_barrier")


def loader(e):
    e(f"s_sub_u32 s{LW}, s{S_WAVE}, 4\ns_lshl_b32 s{S_M0B}, s{LW}, 12\ns_mov_b32 s{S_SLOT}, s{S_M0B}")
    e("v_lshlrev_b32 v20, 4, v1")
    L0, P0, D1, F0, S0, D2 = 72, 73, 74, 75, 76, 77
    e(f"s_lshl_b32 s{L0}, s{S_LT}, 7\ns_lshl_b32 s{P0}, s{S_PT}, 6\ns_lshl_b32 s{D1}, s{S_DT1}, 7\ns_lshl_b32 s{F0}, s{S_FT}, 7")
    e(f"s_lshl_b32 s{S0}, s{S_ST}, 7\ns_lshl_b32 s{D2}, s{S_DT2}, 7")

    def set_bu(e):
        srd(e, 56, 'x', 0, 4 * MB)
        e(f"s_and_b32 s{T0}, s{LW}, 1\ns_cmp_eq_u32 s{T0}, 0\ns_cselect_b32 s60, s{P['bre']}, s{P['bim']}\ns_cselect_b32 s61, s{P['bre']+1}, s{P['bim']+1}")
        e(f"s_mov_b32 s62, 0x{2*MB:x}\ns_mov_b32 s63, 0x20000")
        ld_voff_kc(e, VA, L0, 2048, scan=True)
        ld_voff_kc(e, VB, P0, 2048, bcat=True)
        e(f"s_mov_b32 s{S_A}, 0\ns_mov_b32 s{S_B}, 0")

    def set_hflag(e):
        e(f"s_lshl_b32 s{T0}, s{S_ST}, 8\ns_add_u32 s{T0}, s{T0}, {F_H}\nv_lshlrev_b32 v{FH[1]}, 2, v1\nv_add_u32 v{FH[1]}, s{T0}, v{FH[1]}\nv_mov_b32 v{FH[0]}, 0")

    def set_m1(e):
        srd(e, 56, 'w1', 0, 2048 * 3584 * 2)
        srd(e, 60, 'ws', WS_HH - 4096, 4 * MB + 4096)
        ld_voff_ks(e, VA, F0, 7168)
        ld_voff_kb(e, VB, D1, 1024)
        e(f"s_mov_b32 s{S_A}, 0\ns_mov_b32 s{S_B}, 0")

    def set_ch(e):
        e(f"s_cmp_eq_u32 s{S_KH}, 0\ns_cselect_b32 s56, s{P['cre']}, s{P['cim']}\ns_cselect_b32 s57, s{P['cre']+1}, s{P['cim']+1}")
        e(f"s_mov_b32 s58, 0x{2*MB:x}\ns_mov_b32 s59, 0x20000")
        srd(e, 60, 'ws', WS_HP, 8 * MB)
        ld_voff_kc(e, VA, D2, 2048, scan=True)
        ld_voff_kt(e, VB, S_ST)
        e(f"s_mov_b32 s{S_A}, 0\ns_lshl_b32 s{S_B}, s{S_KH}, 22")

    def set_uw(e):
        srd(e, 56, 'ws', WS_U - 4096, 1024 * 3584 * 2 + 4096)
        srd(e, 60, 'w2', 0, 3584 * 2048 * 2)
        ld_voff_kb(e, VA, D2, 1024)
        ld_voff_ks(e, VB, S0, 4096)
        e(f"s_mul_i32 s{S_A}, s{S_KH}, 0x{KO*8*1024*16:x}\ns_mul_i32 s{S_B}, s{S_KH}, 0x{KO*64*4096:x}")

    def chk_h(e):
        ld_check(e, 64, FH)

    def chk_u(e):
        e(f"s_cmp_eq_u32 s{S_KH}, 0\ns_cselect_b32 s{T3}, {4*((KO+1)//2)}, {112-4*(KO//2)}")
        ld_check(e, f"s{T3}", FU)

    e(f"s_cmp_eq_u32 s{S_KH}, 0\ns_cselect_b32 s78, {KO}, {56-KO}")
    seg_bu = Seg(16, set_bu, 128, 128)
    seg_m1 = Seg(32, set_m1, 64 * 7168, 8 * 1024 * 16)
    seg_ch = Seg(16, set_ch, 128, 64 * 4096)
    seg_uw = Seg("s78", set_uw, 8 * 1024 * 16, 64 * 4096)
    spare = e.lab("Lsp")
    e2 = E()
    if "nopf" not in OPT and not NPF:
        srd(e2, 68, 'w1', 0, 2048 * 3584 * 2)
        e2(f"s_lshl_b32 s{T3}, s2, 2\ns_add_u32 s{T3}, s{T3}, s{LW}\ns_lshl_b32 s{T3}, s{T3}, 10\ns_sleep {PFS}")
        for i in range(14):
            e2(f"buffer_load_dwordx4 v[24:27], v20, s[68:71], s{T3} offen\ns_add_u32 s{T3}, s{T3}, 0x{MB:x}")
    e2("s_barrier")
    apro = "\n".join(e2.L)
    e(f"s_cmp_ge_u32 s{S_IDX}, 28\ns_cbranch_scc1 {spare}")
    loader_stream(e, [seg_bu, seg_m1, seg_ch, seg_uw], apro)
    e("s_endpgm")
    e(f"{spare}:")
    loader_stream(e, [seg_bu], apro)
    if "nopf" not in OPT:
        e(f"s_sub_u32 s{T3}, s{S_IDX}, 28\ns_lshl_b32 s{T3}, s{T3}, 3\ns_add_u32 s{T3}, s{T3}, s{S_XCD}\ns_lshl_b32 s{T3}, s{T3}, 2\ns_add_u32 s{T3}, s{T3}, s{LW}\ns_lshl_b32 s{T3}, s{T3}, 10")
        for nm, sz in (('cre', 2 * MB), ('cim', 2 * MB), ('w2', 3584 * 2048 * 2)):
            srd(e, 68, nm, 0, sz)
            l = e.lab("Lpf")
            e(f"s_mov_b32 s{T2}, s{T3}\ns_mov_b32 s{S_CNT}, {sz//(4*131072)}\n{l}:")
            for i in range(4):
                e(f"buffer_load_dwordx4 v[24:27], v20, s[68:71], s{T2} offen\ns_add_u32 s{T2}, s{T2}, 0x20000")
            e(f"s_waitcnt vmcnt(40)\ns_sub_u32 s{S_CNT}, s{S_CNT}, 1\ns_cmp_lg_u32 s{S_CNT}, 0\ns_cbranch_scc1 {l}")
    e("s_barrier")
    loader_stream(e, [seg_ch, seg_uw])
    e("s_endpgm")


class Opnd:
    def __init__(s, mode, lds_off, base, cur, perm):
        s.mode, s.lds_off, s.base, s.cur, s.perm = mode, lds_off, base, cur, perm
        s.nread = 4 if mode in ('KS', 'KT') else 2


def cw_base(e, op, s_wx, t0=2, t1=3, t2=4, t3=5):
    va = op.base
    if op.mode == 'KB':
        e(f"v_and_b32 v{t0}, 31, v1\nv_lshrrev_b32 v{t1}, 5, v1\nv_lshlrev_b32 v{t0}, 4, v{t0}\nv_lshl_add_u32 v{t0}, v{t1}, 11, v{t0}")
        e(f"s_lshl_b32 s{T0}, s{s_wx}, 10\ns_add_u32 s{T0}, s{T0}, {op.lds_off}\nv_add_u32 v{va}, s{T0}, v{t0}")
    elif op.mode == 'KT':
        e(f"v_bfe_u32 v{t0}, v1, 4, 1\nv_bfe_u32 v{t1}, v1, 1, 1\nv_lshl_add_u32 v{t0}, v{t0}, 1, v{t1}")
        e(f"v_bfe_u32 v{t1}, v1, 2, 2\nv_lshrrev_b32 v{t2}, 5, v1\nv_lshl_add_u32 v{t1}, v{t2}, 3, v{t1}")
        e(f"v_lshlrev_b32 v{t2}, 2, v{t0}\nv_xor_b32 v{t1}, v{t1}, v{t2}\nv_lshlrev_b32 v{t1}, 4, v{t1}\nv_lshl_add_u32 v{t1}, v{t0}, 10, v{t1}")
        e(f"v_and_b32 v{t2}, 1, v1\nv_lshl_add_u32 v{t1}, v{t2}, 3, v{t1}")
        e(f"s_lshl_b32 s{T0}, s{s_wx}, 13\ns_add_u32 s{T0}, s{T0}, {op.lds_off}\nv_add_u32 v{va}, s{T0}, v{t1}")
    elif op.mode == 'KC':
        e(f"v_and_b32 v{t0}, 31, v1\nv_lshrrev_b32 v{t1}, 5, v1")
        if op.perm == 'scan':
            e(f"v_bfe_u32 v{t2}, v{t0}, 2, 1\nv_lshlrev_b32 v{t2}, 5, v{t2}\nv_lshrrev_b32 v{t3}, 3, v{t0}")
            e(f"v_lshl_add_u32 v{t2}, v{t3}, 2, v{t2}\nv_and_b32 v{t0}, 3, v{t0}\nv_add_u32 v{t0}, v{t0}, v{t2}")
            e(f"v_bfe_u32 v{t2}, v{t0}, 1, 2\nv_bfe_u32 v{t3}, v{t0}, 5, 1\nv_lshl_add_u32 v{t2}, v{t3}, 2, v{t2}")
        else:
            e(f"v_bfe_u32 v{t2}, v{t0}, 1, 3")
        e(f"s_lshl_b32 s{T0}, s{s_wx}, 6\nv_add_u32 v{t0}, s{T0}, v{t0}")
        e(f"v_xor_b32 v{t1}, v{t1}, v{t2}\nv_lshlrev_b32 v{t1}, 4, v{t1}")
        e(f"v_lshl_add_u32 v{t0}, v{t0}, 7, v{t1}\nv_add_u32 v{va}, {op.lds_off}, v{t0}")
    else:
        e(f"v_bfe_u32 v{t0}, v1, 2, 2\nv_lshrrev_b32 v{t1}, 5, v1\nv_lshl_add_u32 v{t1}, v{t1}, 3, v{t0}\nv_lshlrev_b32 v{t1}, 8, v{t1}")
        if op.perm == 'nat':
            e(f"v_bfe_u32 v{t2}, v1, 4, 1\nv_lshlrev_b32 v{t2}, 5, v{t2}\nv_and_b32 v{t3}, 3, v1\nv_lshl_add_u32 v{t2}, v{t3}, 3, v{t2}")
        else:
            e(f"v_bfe_u32 v{t2}, v1, 4, 1\nv_lshlrev_b32 v{t2}, 5, v{t2}\nv_and_b32 v{t3}, 1, v1\nv_lshl_add_u32 v{t2}, v{t3}, 4, v{t2}")
            e(f"v_bfe_u32 v{t3}, v1, 1, 1\nv_lshl_add_u32 v{t2}, v{t3}, 3, v{t2}")
        e(f"v_add_u32 v{t1}, v{t1}, v{t2}\nv_add_u32 v{t1}, {op.lds_off}, v{t1}")
        e(f"s_lshl_b32 s{T0}, s{s_wx}, 1\nv_xor_b32 v{t2}, s{T0}, v{t0}\nv_lshl_add_u32 v{va}, v{t2}, 6, v{t1}")


def cur_addr(op):
    L = [f"v_add_u32 v{op.cur}, s{S_SLOT}, v{op.base}"]
    if op.mode == 'KC':
        L += [f"v_xor_b32 v{op.cur+kk}, {kk<<5}, v{op.cur}" for kk in range(1, 4)]
    elif op.mode in ('KS', 'KT'):
        L += [f"v_xor_b32 v{op.cur+1}, 64, v{op.cur}"]
    return L


FR = 40


def frag_reads(op, kk, dst):
    R = []
    if "noread" in OPT:
        return R
    for j in range(2):
        d = dst + 4 * j
        if op.mode == 'KB':
            R.append(f"ds_read_b128 v[{d}:{d+3}], v{op.cur} offset:{kk*4096+j*512}")
        elif op.mode == 'KC':
            jo = 2048 if op.perm == 'scan' else 4096
            R.append(f"ds_read_b128 v[{d}:{d+3}], v{op.cur+kk} offset:{j*jo}")
        elif op.mode == 'KT':
            for t in range(2):
                R.append(f"ds_read_b64_tr_b16 v[{d+2*t}:{d+2*t+1}], v{op.cur+t} offset:{kk*256+j*4096}")
        else:
            for t in range(2):
                R.append(f"ds_read_b64_tr_b16 v[{d+2*t}:{d+2*t+1}], v{op.cur+j} offset:{kk*4096+t*1024}")
    return R


def reads(ops, kk):
    A, B = ops
    d = FR + 16 * kk
    a, b = frag_reads(A, kk, d), frag_reads(B, kk, d + 8)
    ha, hb = len(a) // 2, len(b) // 2
    return a[:ha] + b[:hb] + b[hb:] + a[ha:]


def mfmas(acc, kk, zero=False):
    d = FR + 16 * kk
    M = []
    for j in range(2):
        for jn in range(2):
            a = acc + 32 * j + 16 * jn
            M.append(f"v_mfma_f32_32x32x16_bf16 v[{a}:{a+15}], v[{d+4*j}:{d+4*j+3}], v[{d+8+4*jn}:{d+8+4*jn+3}], " + ("0" if zero else f"v[{a}:{a+15}]"))
    if "nomfma" in OPT:
        M = ["s_nop 0"] * 4
    return M


TRANS = ("v_exp_f32", "v_rcp_f32", "v_sqrt_f32", "v_sin_f32", "v_cos_f32", "v_log_f32", "v_mul_lo_u32")


def ucost(u):
    c = 0
    for l in u.split("\n"):
        l = l.strip()
        if not l or l.endswith(":"):
            continue
        if l.startswith("s_cbranch_vccz"):
            break
        c += 16 if l.startswith(TRANS) else 4
    return c


class Side:
    def __init__(s, items=()):
        s.q = list(items)
        s.hold = 0
        s.credit = 0

    def take(s, budget):
        out = []
        if s.hold > 0:
            s.hold -= 1
            return out
        s.credit = min(s.credit + budget, budget + 16)
        while s.q:
            u = s.q[0]
            if isinstance(u, tuple):
                s.q.pop(0)
                s.hold = u[1] * (16 if u[0] == 'skip' else 1)
                s.credit = 0
                break
            c = ucost(u)
            if c > s.credit and (out or c <= 32):
                break
            out.append(s.q.pop(0))
            s.credit -= c
        return out

    def flush(s, e):
        for u in s.q:
            if not isinstance(u, tuple):
                e(u)
        s.q = []


def step(e, cur, nxt, acc, side=None, zero=False, pre=None, post=None):
    nr = cur[0].nread + cur[1].nread

    def inter(M, R):
        per = (len(R) + 3) // 4
        for i in range(4):
            e(M[i])
            rr = R[i * per:(i + 1) * per]
            for r in rr:
                e(r)
            if side is not None:
                for u in side.take(max(side.bud + 8 - 4 * len(rr), 4)):
                    e(u)

    e(f"s_waitcnt lgkmcnt({nr})")
    inter(mfmas(acc, 0, zero), reads(cur, 2))
    e(f"s_waitcnt lgkmcnt({nr})")
    inter(mfmas(acc, 1), reads(cur, 3))
    e(f"s_add_u32 s{S_SLOT}, s{S_SLOT}, {STG}\ns_cmp_ge_u32 s{S_SLOT}, {NS*STG}\ns_cselect_b32 s{S_SLOT}, 0, s{S_SLOT}")
    e(f"s_waitcnt lgkmcnt({nr})")
    inter(mfmas(acc, 2), (cur_addr(nxt[0]) + cur_addr(nxt[1])) if nxt else [])
    if pre:
        pre()
    e("s_waitcnt lgkmcnt(0)\ns_barrier")
    inter(mfmas(acc, 3), (reads(nxt, 0) + reads(nxt, 1)) if nxt else [])
    if post:
        post()


def rolled(e, ops, acc, n):
    l = e.lab("Lg")
    if isinstance(n, int):
        e(f"s_mov_b32 s{S_CNT}, {n}")
    else:
        e(n)
    e(f".p2align 5\n{l}:")
    step(e, ops, ops, acc)
    e(f"s_sub_u32 s{S_CNT}, s{S_CNT}, 1\ns_cmp_lg_u32 s{S_CNT}, 0\ns_cbranch_scc1 {l}")


def gemm_start(e, ops):
    for t in cur_addr(ops[0]) + cur_addr(ops[1]):
        e(t)
    e("s_barrier")
    for r in reads(ops, 0) + reads(ops, 1):
        e(r)


def unrolled(e, ops, nxt, acc, n, side, bud=None, zero=False, pre={}, post={}, last=True):
    if side is not None:
        side.bud = bud or BUD
    for k in range(n):
        step(e, ops, ops if (k < n - 1 or not last) else nxt, acc, side, zero and k == 0, pre.get(k), post.get(k))
        if side is not None and not side.q and not getattr(side, 'rep', 0):
            side.rep = 1
            print(f"side done in step {k}", file=sys.stderr)
    if side is not None:
        print(f"side left after {n} steps: {len(side.q)}", file=sys.stderr)


def w0(e, body):
    l = e.lab("Lw")
    return f"s_cmp_lg_u32 s{S_WAVE}, 0\ns_cbranch_scc1 {l}\n{body}\n{l}:"


def pin_sample(sr):
    return f"buffer_load_dword v{VPV}, v{VPO}, s[{sr}:{sr+3}], 0 offen sc1"


def pin_check(e, sr, val, mask=None):
    lp, ok = e.lab("Lcp"), e.lab("Lco")
    t = f"s_mov_b32 s{T2}, {TMO}\n"
    if mask:
        t += mask + "\n"
    t += f"{lp}:\ns_waitcnt vmcnt(0)\nv_cmp_ne_u32 vcc, {val}, v{VPV}\ns_nop 1\n"
    if mask:
        t += f"s_and_b64 vcc, vcc, s[{T0}:{T1}]\n"
    t += f"s_cbranch_vccz {ok}\ns_sleep {SLP}\n{pin_sample(sr)}\n"
    t += f"s_sub_u32 s{T2}, s{T2}, 1\ns_cbranch_scc0 {lp}\n{ok}:"
    return t


def cmul_sq(re, im, t):
    return f"v_mul_f32 v{t}, v{re}, v{im}\nv_mul_f32 v{re}, v{re}, v{re}\nv_fma_f32 v{re}, -v{im}, v{im}, v{re}\nv_add_f32 v{im}, v{t}, v{t}"


def gre(t):
    return ACB + 32 * (t >> 4) + (t & 15)


def gim(t):
    return gre(t) + 16


def poll_unit(e, vflag, voff, soff, mask):
    lp, ok = e.lab("Lcp"), e.lab("Lco")
    t = f"s_mov_b32 s{T2}, {TMO}\ns_waitcnt vmcnt(0)\n"
    if mask:
        t += mask + "\n"
    t += f"{lp}:\nv_cmp_ne_u32 vcc, 1, v{vflag}\ns_nop 1\n"
    if mask:
        t += f"s_and_b64 vcc, vcc, s[{T0}:{T1}]\n"
    t += f"s_cbranch_vccz {ok}\ns_sleep {SLP}\nbuffer_load_dword v{vflag}, v{voff}, s[{SR_FLG}:{SR_FLG+3}], {soff} offen sc1\ns_waitcnt vmcnt(0)\n"
    t += f"s_sub_u32 s{T2}, s{T2}, 1\ns_cbranch_scc0 {lp}\n{ok}:"
    return t


def side_scan(e, with_b1=True):
    S = ["s_nop 7\ns_nop 7"]
    er, ei, nr, ni = 104, 105, 106, 107
    S.append(f"v_mov_b32 v{er}, v{gre(0)}\nv_mov_b32 v{ei}, v{gim(0)}")
    for t in range(1, 32):
        S.append(f"v_fma_f32 v{nr}, v{AR}, v{er}, v{gre(t)}\nv_fma_f32 v{ni}, v{AR}, v{ei}, v{gim(t)}")
        S.append(f"v_fma_f32 v{nr}, -v{AI}, v{ei}, v{nr}\nv_fma_f32 v{ni}, v{AI}, v{er}, v{ni}")
        er, nr = nr, er
        ei, ni = ni, ei
    S.append(f"v_mov_b32 v{LOR}, v{er}\nv_mov_b32 v{LOI}, v{ei}\ns_nop 1\n"
             f"v_permlane32_swap_b32 v{LOR}, v{er}\nv_permlane32_swap_b32 v{LOI}, v{ei}\ns_nop 1")
    S.append(f"v_fma_f32 v110, v{P32R}, v{LOR}, v{er}\nv_fma_f32 v111, v{P32R}, v{LOI}, v{ei}")
    S.append(f"v_fma_f32 v110, -v{P32I}, v{LOI}, v110\nv_fma_f32 v111, v{P32I}, v{LOR}, v111")
    S.append(f"s_add_u32 s{T3}, s{S_G32}, s{S_CH}\ns_lshl_b32 s{T3}, s{T3}, 8\n"
             f"buffer_store_dwordx2 v[110:111], v{VC8}, s[{SR_AGG}:{SR_AGG+3}], s{T3} offen sc1")
    S.append(('skip', 2))
    S.append(f"s_waitcnt vmcnt(0)\nv_mov_b32 v2, 0\nv_mov_b32 v3, 1\ns_mov_b64 exec, 1\n"
             f"buffer_store_dword v3, v2, s[{SR_FLG}:{SR_FLG+3}], s{S_FA} offen sc1\ns_mov_b64 exec, -1")
    S.append(('skip', SKA))
    S.append(f"v_lshrrev_b32 v4, 1, v{VC8}\ns_lshl_b32 s81, s{S_G32}, 2\n"
             f"buffer_load_dword v5, v4, s[{SR_FLG}:{SR_FLG+3}], s81 offen sc1")
    S.append(f"v_lshrrev_b32 v2, 5, v1\nv_lshlrev_b32 v2, 4, v2\ns_sub_u32 s{T3}, s{S_CH}, 1\nv_sub_u32 v2, s{T3}, v2")
    S.append(f"v_lshl_add_u32 v3, v2, 8, v{VC8}\ns_lshl_b32 s82, s{S_G32}, 8")
    S.append(('skip', 2))
    S.append(poll_unit(e, 5, 4, "s81", f"v_lshrrev_b32 v106, 3, v{VC8}\nv_cmp_gt_u32 s[{T0}:{T1}], s{S_CH}, v106"))
    cr, ci, tr, ti = 104, 105, 106, 107
    PR = list(range(108, 128, 2)) + [34, 36, 38, 18, 22, 104]
    S += [f"v_subrev_u32 v4, {256*i}, v3\nbuffer_load_dwordx2 v[{PR[i]}:{PR[i]+1}], v4, s[{SR_AGG}:{SR_AGG+3}], s82 offen" for i in range(15, -1, -1)]
    S.append(('skip', SKB))
    S.append("s_waitcnt vmcnt(0)")
    for i in range(14, -1, -1):
        a = PR[i]
        S.append(f"v_fma_f32 v{tr}, v{P64R}, v{cr}, v{a}\nv_fma_f32 v{ti}, v{P64R}, v{ci}, v{a+1}")
        S.append(f"v_fma_f32 v{tr}, -v{P64I}, v{ci}, v{tr}\nv_fma_f32 v{ti}, v{P64I}, v{cr}, v{ti}")
        cr, tr = tr, cr
        ci, ti = ti, ci
    S.append(f"v_mov_b32 v{tr}, v{cr}\nv_mov_b32 v{ti}, v{ci}\ns_nop 1\n"
             f"v_permlane32_swap_b32 v{tr}, v{cr}\nv_permlane32_swap_b32 v{ti}, v{ci}\ns_nop 1")
    S.append(f"v_fma_f32 v{tr}, v{PKR}, v{cr}, v{tr}\nv_fma_f32 v{ti}, v{PKR}, v{ci}, v{ti}")
    S.append(f"v_fma_f32 v{tr}, -v{PKI}, v{ci}, v{tr}\nv_fma_f32 v{ti}, v{PKI}, v{cr}, v{ti}")
    cr, tr = tr, cr
    ci, ti = ti, ci
    S.append(f"v_fma_f32 v{tr}, v{P32R}, v{cr}, v{LOR}\nv_fma_f32 v{ti}, v{P32R}, v{ci}, v{LOI}")
    S.append(f"v_fma_f32 v{tr}, -v{P32I}, v{ci}, v{tr}\nv_fma_f32 v{ti}, v{P32I}, v{cr}, v{ti}")
    S.append(f"v_cmp_lt_u32 vcc, 31, v1\ns_nop 1\nv_cndmask_b32 v{cr}, v{cr}, v{tr}, vcc\nv_cndmask_b32 v{ci}, v{ci}, v{ti}, vcc")
    gr, gi, nr, ni = cr, ci, tr, ti
    if with_b1:
        BQ = 112
        S.append(f"v_lshrrev_b32 v2, 5, v1\nv_lshlrev_b32 v2, 4, v2\ns_lshl_b32 s{T3}, s{S_FT}, 1\ns_add_u32 s{T3}, s{T3}, s{S_WM}\ns_lshl_b32 s{T3}, s{T3}, 7")
        S.append("\n".join(f"buffer_load_dwordx4 v[{BQ+4*i}:{BQ+3+4*i}], v2, s[{SR_B1}:{SR_B1+3}], s{T3} offen offset:{32*i}" for i in range(4)))
    S.append(f"v_lshrrev_b32 v2, 5, v1\nv_lshlrev_b32 v2, 12, v2\nv_lshl_add_u32 v2, v{VC8}, 1, v2")
    S.append(f"s_lshl_b32 s81, s{S_PT}, 5\ns_add_u32 s81, s81, s{S_CH}\ns_lshl_b32 s81, s81, 4\ns_add_u32 s81, s81, s{S_WN}\ns_lshl_b32 s81, s81, 9\ns_add_u32 s82, s81, 0x400000")
    for t in range(32):
        S.append(f"v_fma_f32 v{nr}, v{AR}, v{gr}, v{gre(t)}\nv_fma_f32 v{ni}, v{AR}, v{gi}, v{gim(t)}")
        S.append(f"v_fma_f32 v{nr}, -v{AI}, v{gi}, v{nr}\nv_fma_f32 v{ni}, v{AI}, v{gr}, v{ni}")
        gr, nr = nr, gr
        gi, ni = ni, gi
        S.append(f"v_mul_f32 v{gre(t)}, v{CR}, v{gr}\nv_mul_f32 v{gim(t)}, v{CR}, v{gi}")
        S.append(f"v_fma_f32 v{gre(t)}, -v{CI}, v{gi}, v{gre(t)}\nv_fma_f32 v{gim(t)}, -v{CI}, v{gr}, -v{gim(t)}")
        if t % 8 == 7:
            b = t - 7
            for g, so in ((gre, "s81"), (gim, "s82")):
                S.append("\n".join(f"v_cvt_pk_bf16_f32 v{g(b)+i}, v{g(b+2*i)}, v{g(b+2*i+1)}" for i in range(4)))
                S.append(f"buffer_store_dwordx4 v[{g(b)}:{g(b)+3}], v2, s[{SR_HP}:{SR_HP+3}], {so} offen offset:{128*b} sc1")
    S.append(('skip', 2))
    S.append(f"s_waitcnt vmcnt(0)\nv_mov_b32 v2, 0\nv_mov_b32 v3, 1\ns_mov_b64 exec, 1\n"
             f"buffer_store_dword v3, v2, s[{SR_FLG}:{SR_FLG+3}], s{S_FHo} offen sc1\ns_mov_b64 exec, -1")
    return S


def side_gelu(e):
    S = []
    C0 = -2.0 * math.sqrt(2.0 / math.pi) * math.log2(math.e)
    BQ = 112
    S.append(f"s_mov_b32 s82, 0x{f2u(C0*0.044715):x}\ns_mov_b32 s83, s82\nv_mov_b32 v8, 0x{f2u(C0):x}\nv_mov_b32 v9, v8")
    S.append("v_mov_b32 v10, 1.0\nv_mov_b32 v11, 1.0\nv_mov_b32 v12, 0xffff0000")
    S.append("v_and_b32 v2, 31, v1\nv_lshrrev_b32 v3, 5, v1\nv_lshlrev_b32 v3, 10, v3\nv_add_u32 v2, v2, v3\nv_lshlrev_b32 v2, 4, v2")
    S.append(f"s_lshl_b32 s{T3}, s{S_FT}, 1\ns_add_u32 s{T3}, s{T3}, s{S_WM}\ns_lshl_b32 s{T3}, s{T3}, 13\ns_lshl_b32 s{T2}, s{S_DT1}, 1\ns_add_u32 s{T2}, s{T2}, s{S_WN}\n"
             f"s_lshl_b32 s{T2}, s{T2}, 6\ns_add_u32 s{T3}, s{T3}, s{T2}\ns_lshl_b32 s81, s{T3}, 4")
    UB = 104
    for j in range(2):
        for s in range(2):
            bq = BQ + 4 * (2 * j + s)
            for i in range(4):
                S.append(f"v_lshlrev_b32 v{UB+2*i}, 16, v{bq+i}\nv_and_b32 v{UB+1+2*i}, v12, v{bq+i}")
            for jn in range(2):
                a = ACM + 32 * j + 16 * jn + 8 * s
                for i in range(4):
                    x0, x1 = a + 2 * i, a + 2 * i + 1
                    t0, t1 = (36, 37) if i & 1 else (34, 35)
                    X, T = f"v[{x0}:{x1}]", f"v[{t0}:{t1}]"
                    if "nor1" not in OPT:
                        S.append(f"v_cvt_pk_bf16_f32 v{t0}, v{x0}, v{x1}\nv_lshlrev_b32 v{x0}, 16, v{t0}\nv_and_b32 v{x1}, v12, v{t0}")
                    S.append(f"v_pk_add_f32 {X}, {X}, v[{UB+2*i}:{UB+2*i+1}]")
                    S.append(f"v_cvt_pk_bf16_f32 v{t0}, v{x0}, v{x1}\nv_lshlrev_b32 v{x0}, 16, v{t0}\nv_and_b32 v{x1}, v12, v{t0}")
                    S.append(f"v_pk_mul_f32 {T}, {X}, {X}")
                    S.append(f"v_pk_fma_f32 {T}, {T}, s[82:83], v[8:9]")
                    S.append(f"v_pk_mul_f32 {T}, {T}, {X}")
                    S.append(f"v_exp_f32 v{t0}, v{t0}")
                    S.append(f"v_exp_f32 v{t1}, v{t1}\ns_nop 0")
                    S.append(f"v_pk_add_f32 {T}, {T}, v[10:11]")
                    S.append(f"v_rcp_f32 v{t0}, v{t0}")
                    S.append(f"v_rcp_f32 v{t1}, v{t1}\ns_nop 0")
                    S.append(f"v_pk_mul_f32 {X}, {X}, {T}\nv_cvt_pk_bf16_f32 v{a+i}, v{x0}, v{x1}")
                S.append(f"s_add_u32 s{T3}, s81, 0x{((4*j+2*s)*1024+32*jn)*16:x}\n"
                         f"buffer_store_dwordx4 v[{a}:{a+3}], v2, s[{SR_U}:{SR_U+3}], s{T3} offen sc1")
    S.append(('skip', 2))
    S.append(f"s_waitcnt vmcnt(0)\nv_mov_b32 v2, 0\nv_mov_b32 v3, 1\ns_mov_b64 exec, 1\n"
             f"buffer_store_dword v3, v2, s[{SR_FLG}:{SR_FLG+3}], s{S_FUo} offen sc1\ns_mov_b64 exec, -1")
    return S


def row_voff(sh):
    return [f"v_lshrrev_b32 v3, 4, v1\nv_lshlrev_b32 v3, 10, v3\nv_and_b32 v4, 15, v1\nv_lshl_add_u32 v3, v4, 2, v3\nv_lshlrev_b32 v3, {sh}, v3",
            f"s_lshl_b32 s81, s{S_ST}, 1\ns_add_u32 s81, s81, s{S_WN}\ns_lshl_b32 s81, s81, 10\ns_lshl_b32 s{T3}, s{S_DT2}, 1\ns_add_u32 s81, s81, s{T3}\n"
            f"s_add_u32 s81, s81, s{S_WM}\ns_lshl_b32 s81, s81, {6+sh}"]


def side_base(e):
    S = []
    SX, SR, SD = SR_AGG, SR_HP, SR_U
    S.append(srd_s(SX, 'x', 0, 4 * MB))
    S.append(srd_s(SR, 'ws', WS_ST, 65536))
    S.append(srd_s(SD, 'dsk', 0, 2048))
    S += row_voff(1)
    S.append(f"v_lshlrev_b32 v4, 3, v4\nv_lshrrev_b32 v5, 4, v1\nv_lshlrev_b32 v5, 3, v5\ns_mov_b32 s83, 0xffff0000")
    S.append(f"s_lshl_b32 s{T3}, s{S_DT2}, 1\ns_add_u32 s{T3}, s{T3}, s{S_WM}\ns_lshl_b32 s{T3}, s{T3}, 7\n"
             f"buffer_load_dwordx2 v[106:107], v4, s[{SD}:{SD+3}], s{T3} offen")
    S.append(f"s_lshl_b32 s82, s{S_ST}, 1\ns_add_u32 s82, s82, s{S_WN}\ns_lshl_b32 s82, s82, 11")
    for i in range(16):
        b = ACM + 4 * i
        S.append(f"buffer_load_dwordx2 v[{b}:{b+1}], v3, s[{SX}:{SX+3}], s81 offen\ns_add_u32 s81, s81, 8192")
        S.append(('gap', LGAP))
        S.append(f"buffer_load_dwordx2 v[{b+2}:{b+3}], v5, s[{SR}:{SR+3}], s82 offen offset:{(i>>1)*256+128+(i&1)*32}")
        S.append(('gap', LGAP))
    S.append(('skip', 3))
    S.append("s_waitcnt vmcnt(0)\nv_lshlrev_b32 v104, 16, v106\nv_and_b32 v105, s83, v106\nv_lshlrev_b32 v106, 16, v107\nv_and_b32 v107, s83, v107")
    X, Y, MBR = 108, 112, 116

    def unp(d, a, b):
        return f"v_lshlrev_b32 v{d}, 16, v{a}\nv_and_b32 v{d+1}, s83, v{a}\nv_lshlrev_b32 v{d+2}, 16, v{b}\nv_and_b32 v{d+3}, s83, v{b}"
    cv = f"v_cvt_pk_bf16_f32 v4, v{Y}, v{Y+1}\nv_cvt_pk_bf16_f32 v5, v{Y+2}, v{Y+3}"
    for i in range(16):
        b = ACM + 4 * i
        S.append(unp(X, b, b + 1))
        S.append(f"v_lshlrev_b32 v{MBR}, 16, v{b+2}\nv_and_b32 v{MBR+1}, s83, v{b+2}")
        S.append("\n".join(f"v_pk_add_f32 v[{Y+k}:{Y+k+1}], v[{X+k}:{X+k+1}], v[{MBR}:{MBR+1}] op_sel_hi:[1,0] neg_lo:[0,1] neg_hi:[0,1]" for k in (0, 2)) + "\n" + cv)
        S.append(unp(Y, 4, 5))
        S.append("\n".join(f"v_pk_mul_f32 v[{Y+k}:{Y+k+1}], v[{Y+k}:{Y+k+1}], v[{b+2}:{b+3}] op_sel:[0,1] op_sel_hi:[1,1]" for k in (0, 2)) + "\n" + cv)
        S.append(unp(Y, 4, 5))
        S.append("\n".join(f"v_pk_mul_f32 v[{Y+k}:{Y+k+1}], v[{Y+k}:{Y+k+1}], v[{104+k}:{105+k}]" for k in (0, 2)) + "\n" + cv)
        S.append(unp(Y, 4, 5))
        S.append("\n".join(f"v_pk_add_f32 v[{X+k}:{X+k+1}], v[{X+k}:{X+k+1}], v[{MBR}:{MBR+1}] op_sel:[0,1] op_sel_hi:[1,1]" for k in (0, 2)) + "\n" +
                 "\n".join(f"v_pk_add_f32 v[{b+k}:{b+k+1}], v[{X+k}:{X+k+1}], v[{Y+k}:{Y+k+1}]" for k in (0, 2)))
    if "sbnl" in OPT:
        S = [u for u in S if isinstance(u, tuple) or "buffer_load" not in u]
    if "sbnv" in OPT:
        S = [u for u in S if isinstance(u, tuple) or "buffer_load" in u or "v_pk" not in u and "s83, v" not in u]
    return S


def acc_to_rows(e):
    e(f"s_mul_i32 s{T0}, s{S_WAVE}, {64*272}\nv_and_b32 v4, 31, v1\nv_mul_u32_u24 v4, 272, v4\nv_lshrrev_b32 v5, 5, v1\nv_lshl_add_u32 v4, v5, 7, v4\nv_add_u32 v4, s{T0}, v4")
    e(f"v_lshrrev_b32 v5, 4, v1\nv_mul_u32_u24 v5, 272, v5\nv_and_b32 v34, 15, v1\nv_lshl_add_u32 v5, v34, 4, v5\nv_add_u32 v5, s{T0}, v5")
    e("s_nop 7")
    for j in range(2):
        for jn in range(2):
            for q in range(4):
                a = ACB + 32 * j + 16 * jn + 4 * q
                e(f"ds_write_b128 v4, v[{a}:{a+3}] offset:{jn*32*272+j*64+q*16}")
    e("s_waitcnt lgkmcnt(0)")
    for i in range(16):
        e(f"ds_read_b128 v[{ACB+4*i}:{ACB+4*i+3}], v5 offset:{i*4*272}")


def partial_loads():
    t = ""
    for i in range(16):
        t += f"buffer_load_dwordx4 v[{ACM+4*i}:{ACM+4*i+3}], v2, s[{SR_AGG}:{SR_AGG+3}], s82 offen offset:{(i%4)*1024}\n"
        if i % 4 == 3:
            t += "s_add_u32 s82, s82, 4096\n"
    return t + "s_mov_b32 s83, 1"


def compute(e):
    e(f"s_lshr_b32 s{S_WM}, s{S_WAVE}, 1\ns_and_b32 s{S_WN}, s{S_WAVE}, 1")
    ln_rows(e)
    e(f"s_mov_b32 s{S_SLOT}, 0")
    srd(e, SR_AGG, 'ws', WS_AGG, 262144)
    srd(e, SR_FLG, 'ws', WS_FLG, 16384)
    srd(e, SR_HP, 'ws', WS_HP, 8 * MB)
    srd(e, SR_U, 'ws', WS_ST, 65536)
    srd(e, SR_B1, 'b1', 0, 3584 * 2)
    CA, CB = 16, 20
    bu = (Opnd('KC', 0, 24, CA, 'scan'), Opnd('KC', 16384, 25, CB, 'nat'))
    m1 = (Opnd('KS', 0, 26, CA, 'u8'), Opnd('KB', 16384, 27, CB, 'nat'))
    ch = (bu[0], Opnd('KT', 16384, 28, CB, 'nat'))
    uw = (Opnd('KB', 0, 29, CA, 'nat'), Opnd('KS', 16384, 25, CB, 'nat'))
    for op, w in ((bu[0], S_WM), (bu[1], S_WN)):
        cw_base(e, op, w)
    ts(e)
    gemm_start(e, bu)
    e2 = E()
    for op, w in ((m1[0], S_WM), (m1[1], S_WN), (ch[1], S_WN), (uw[0], S_WM)):
        cw_base(e2, op, w)
    e2(f"v_mov_b32 v{P32R}, v{AR}\nv_mov_b32 v{P32I}, v{AI}")
    for _ in range(5):
        e2(cmul_sq(P32R, P32I, 2))
    e2(f"v_mov_b32 v{P64R}, v{P32R}\nv_mov_b32 v{P64I}, v{P32I}")
    e2(cmul_sq(P64R, P64I, 2))
    e2(f"v_mov_b32 v{PKR}, v{P64R}\nv_mov_b32 v{PKI}, v{P64I}")
    for _ in range(4):
        e2(cmul_sq(PKR, PKI, 2))
    e2(f"v_lshlrev_b32 v{VPO}, 2, v1\nv_mov_b32 v36, 1\nv_mov_b32 v37, s2")
    e2(f"v_lshrrev_b32 v34, 5, v1\nv_lshlrev_b32 v34, 10, v34\ns_lshl_b32 s81, s{S_CH}, 11\ns_mov_b32 s82, 32768")
    e2(f"v_lshrrev_b32 v35, 3, v{VP}\nv_lshlrev_b32 v35, 8, v35\nv_and_b32 v2, 7, v{VP}\nv_lshl_add_u32 v35, v2, 2, v35")
    sd = Side(e2.L)
    CK = 16 - NS

    def stat_loads():
        for i in range(8):
            o = (i >> 1) * 256 + (i & 1) * 16
            e(f"buffer_load_dwordx4 v[{ACM+4*i}:{ACM+4*i+3}], v34, s[{SR_U}:{SR_U+3}], s81 offen offset:{o}")
            e(f"buffer_load_dwordx4 v[{ACM+32+4*i}:{ACM+32+4*i+3}], v34, s[{SR_U}:{SR_U+3}], s81 offen offset:{o+32}")
        e(f"buffer_load_dword v104, v35, s[{SR_U}:{SR_U+3}], 0 offen offset:64\nbuffer_load_dword v105, v35, s[{SR_U}:{SR_U+3}], s82 offen offset:64")

    def arrive():
        assert not sd.q
        e(w0(e, f"s_mov_b64 exec, 1\nbuffer_store_byte v36, v37, s[{SR_DBG}:{SR_DBG+3}], 0 offen sc1\ns_mov_b64 exec, -1"))

    pre = {ARR: lambda: e(f"s_waitcnt vmcnt({NPF})"), CK: lambda: e(w0(e, pin_check(e, SR_DBG, "0x01010101")))}
    post = {ARR: arrive, CK - 3: lambda: e(w0(e, pin_sample(SR_DBG))), CK: stat_loads}
    unrolled(e, bu, None, ACB, 15, sd, zero=True, pre=pre, post=post, last=False)

    def apply_stats():
        cw_base(e, uw[1], S_WN)
        e("s_waitcnt vmcnt(0)\ns_nop 7")
        for t in range(0, 32, 2):
            e(f"v_pk_fma_f32 v[{gre(t)}:{gre(t)+1}], v[{ACM+t}:{ACM+t+1}], v[104:105], v[{gre(t)}:{gre(t)+1}] op_sel:[0,0,0] op_sel_hi:[1,0,1] neg_lo:[1,0,0] neg_hi:[1,0,0]")
            e(f"v_pk_fma_f32 v[{gim(t)}:{gim(t)+1}], v[{ACM+t}:{ACM+t+1}], v[104:105], v[{gim(t)}:{gim(t)+1}] op_sel:[0,1,0] op_sel_hi:[1,1,1] neg_lo:[1,0,0] neg_hi:[1,0,0]")
        for t in range(0, 32, 2):
            for g in (gre, gim):
                e(f"v_pk_mul_f32 v[{g(t)}:{g(t)+1}], v[{g(t)}:{g(t)+1}], v[{ACM+32+t}:{ACM+33+t}]")
        srd(e, SR_U, 'ws', WS_U, 1024 * 3584 * 2)

    hoff = f"s_lshl_b32 s{T0}, s{S_ST}, 8\ns_add_u32 s{T0}, s{T0}, {F_H}\nv_lshlrev_b32 v{VPO}, 2, v1\nv_add_u32 v{VPO}, s{T0}, v{VPO}\n"
    uoff = (f"s_lshl_b32 s{T0}, s{S_DT2}, 9\ns_mul_i32 s{T1}, s{S_KH}, {16*(KO//2)}\ns_add_u32 s{T0}, s{T0}, s{T1}\ns_add_u32 s{T0}, s{T0}, {F_U}\n"
            f"v_lshlrev_b32 v{VPO}, 2, v1\nv_add_u32 v{VPO}, s{T0}, v{VPO}\n")
    assert 4 * ((KO + 1) // 2) <= 64 and 112 - 4 * (KO // 2) <= 64
    umask = f"s_cmp_eq_u32 s{S_KH}, 0\ns_cselect_b32 s{T0}, {4*((KO+1)//2)}, {112-4*(KO//2)}\nv_cmp_gt_u32 s[{T0}:{T1}], s{T0}, v1"

    spare, join = e.lab("Lcs"), e.lab("Lcj")
    e(f"s_cmp_ge_u32 s{S_IDX}, 28\ns_cbranch_scc1 {spare}")
    step(e, bu, m1, ACB)
    apply_stats()
    ts(e)
    sd = Side(side_scan(e))
    if "sf" in OPT:
        sd.flush(e)
        ts(e)

    def h_sample():
        assert not sd.q, f"scan not finished: {len(sd.q)}"
        e(w0(e, hoff + pin_sample(SR_FLG)))

    unrolled(e, m1, ch, ACM, 32, sd, zero=True, pre={CK + 16: lambda: e(w0(e, pin_check(e, SR_FLG, "1")))}, post={CK + 16 - 3: h_sample})
    ts(e)
    sg = Side(side_gelu(e))
    if "sf" in OPT:
        e("s_nop 7\ns_nop 7")
        sg.flush(e)
        ts(e)

    def u_check():
        print(f"gelu flushed units: {len(sg.q)}", file=sys.stderr)
        sg.flush(e)
        e(w0(e, uoff + pin_sample(SR_FLG) + "\n" + pin_check(e, SR_FLG, "1", umask)))

    unrolled(e, ch, uw, ACB, 16, sg, bud=BUDG, zero=True, pre={CK: u_check})
    e(f"s_branch {join}")
    e(f"{spare}:")
    step(e, bu, None, ACB)
    apply_stats()
    Side(side_scan(e, False)).flush(e)
    e(w0(e, hoff + pin_sample(SR_FLG) + "\n" + pin_check(e, SR_FLG, "1").replace(f"s_sleep {SLP}", "s_sleep 16")))
    e("s_barrier")
    gemm_start(e, ch)
    sg = Side([])
    unrolled(e, ch, uw, ACB, 16, None, zero=True,
             pre={CK: lambda: e(w0(e, uoff + pin_sample(SR_FLG) + "\n" + pin_check(e, SR_FLG, "1", umask)))})
    e(f"{join}:")
    ts(e)
    snd, fin = e.lab("Lsn"), e.lab("Lfin")
    e(f"s_cmp_eq_u32 s{S_KH}, 1\ns_cbranch_scc1 {snd}")
    NT = 6
    srd(e, SR_AGG, 'ws', WS_XCH, 8 * MB)
    e(f"s_lshl_b32 s{T3}, s{S_ST}, 3\ns_add_u32 s{T3}, s{T3}, s{S_DT2}\ns_lshl_b32 s{T3}, s{T3}, 2\ns_add_u32 s{T3}, s{T3}, s{S_WAVE}\n"
      f"s_lshl_b32 s82, s{T3}, 14\ns_lshl_b32 s{T3}, s{T3}, 2\ns_add_u32 s{T3}, s{T3}, {F_X}\nv_mov_b32 v{VPO}, s{T3}\nv_lshlrev_b32 v2, 4, v1\ns_mov_b32 s83, 0")
    rolled(e, uw, ACB, KO - NT)

    def x_try():
        l1, l2 = e.lab("Lx"), e.lab("Lx")
        e(f"s_waitcnt vmcnt(0)\nv_cmp_ne_u32 vcc, 1, v{VPV}\ns_nop 1\ns_cbranch_vccz {l1}\n{pin_sample(SR_FLG)}\ns_branch {l2}\n{l1}:\n{partial_loads()}\n{l2}:")

    unrolled(e, uw, None, ACB, NT, None, post={0: lambda: e(pin_sample(SR_FLG)), 3: x_try})
    n0 = NTS[0]
    ts(e)
    srd(e, SR_HP, 'out', 0, 8 * MB)
    acc_to_rows(e)
    for u in row_voff(2):
        e(u)
    l1 = e.lab("Lx")
    e(f"s_cmp_eq_u32 s83, 1\ns_cbranch_scc1 {l1}\n" + pin_check(e, SR_FLG, "1").replace(f"s_sleep {SLP}", "s_sleep 2") + f"\n{partial_loads()}\n{l1}:")
    e("s_waitcnt vmcnt(0)")
    for i in range(16):
        a = 4 * i
        e(f"s_waitcnt lgkmcnt({15-i})")
        e(f"v_pk_add_f32 v[{ACB+a}:{ACB+a+1}], v[{ACB+a}:{ACB+a+1}], v[{ACM+a}:{ACM+a+1}]\nv_pk_add_f32 v[{ACB+a+2}:{ACB+a+3}], v[{ACB+a+2}:{ACB+a+3}], v[{ACM+a+2}:{ACM+a+3}]")
        e(f"buffer_store_dwordx4 v[{ACB+a}:{ACB+a+3}], v3, s[{SR_HP}:{SR_HP+3}], s81 offen\ns_add_u32 s81, s81, 16384")
    e(f"s_branch {fin}")
    e(f"{snd}:")
    NTS[0] = n0
    NT = NTS_
    rolled(e, uw, ACB, 56 - KO - NT)
    sd = Side(side_base(e))
    unrolled(e, uw, None, ACB, NT, sd)
    sd.flush(e)
    ts(e)
    srd(e, SR_AGG, 'ws', WS_XCH, 8 * MB)
    e(f"s_lshl_b32 s{T3}, s{S_ST}, 3\ns_add_u32 s{T3}, s{T3}, s{S_DT2}\ns_lshl_b32 s{T3}, s{T3}, 2\ns_add_u32 s{T3}, s{T3}, s{S_WAVE}")
    e(f"s_lshl_b32 s82, s{T3}, 14\ns_lshl_b32 s81, s{T3}, 2\ns_add_u32 s81, s81, {F_X}")
    acc_to_rows(e)
    e("v_lshlrev_b32 v2, 4, v1")
    for i in range(16):
        a = 4 * i
        e(f"s_waitcnt lgkmcnt({15-i})")
        e(f"v_pk_add_f32 v[{ACB+a}:{ACB+a+1}], v[{ACB+a}:{ACB+a+1}], v[{ACM+a}:{ACM+a+1}]\nv_pk_add_f32 v[{ACB+a+2}:{ACB+a+3}], v[{ACB+a+2}:{ACB+a+3}], v[{ACM+a+2}:{ACM+a+3}]")
        e(f"buffer_store_dwordx4 v[{ACB+a}:{ACB+a+3}], v2, s[{SR_AGG}:{SR_AGG+3}], s82 offen offset:{(i%4)*1024} sc1")
        if i % 4 == 3:
            e("s_add_u32 s82, s82, 4096")
    e("s_waitcnt vmcnt(0)\nv_mov_b32 v2, 0\nv_mov_b32 v3, 1")
    e(f"s_mov_b64 exec, 1\nbuffer_store_dword v3, v2, s[{SR_FLG}:{SR_FLG+3}], s81 offen sc1\ns_mov_b64 exec, -1")
    e(f"{fin}:")
    ts(e)
    ts_store(e)


def gen(e):
    name = NAME + "_kernel"
    e(f".globl {name}\n.p2align 8\n.type {name},@function\n{name}:")
    e("s_cmp_ge_u32 s2, 256\ns_cbranch_scc1 L_end")
    e("s_load_dwordx16 s[4:19], s[0:1], 0\ns_load_dwordx16 s[20:35], s[0:1], 64\ns_load_dwordx2 s[36:37], s[0:1], 128")
    rts(e, 0)
    ts(e)
    e(f"v_lshrrev_b32 v2, 6, v0\nv_and_b32 v1, 63, v0\nv_readfirstlane_b32 s{S_WAVE}, v2")
    X, I = S_XCD, S_IDX
    e(f"s_and_b32 s{X}, s2, 7\ns_lshr_b32 s{I}, s2, 3")
    e(f"s_and_b32 s{S_LT}, s{X}, 3\ns_lshl_b32 s{S_LT}, s{S_LT}, 2\ns_and_b32 s{T0}, s{I}, 3\ns_add_u32 s{S_LT}, s{S_LT}, s{T0}")
    e(f"s_lshr_b32 s{S_PT}, s{X}, 2\ns_lshl_b32 s{S_PT}, s{S_PT}, 3\ns_lshr_b32 s{T0}, s{I}, 2\ns_add_u32 s{S_PT}, s{S_PT}, s{T0}")
    e(f"s_and_b32 s{S_DT1}, s{X}, 1\ns_lshl_b32 s{S_DT1}, s{S_DT1}, 2\ns_and_b32 s{T0}, s{I}, 3\ns_add_u32 s{S_DT1}, s{S_DT1}, s{T0}")
    e(f"s_lshr_b32 s{S_FT}, s{X}, 1\ns_mul_i32 s{S_FT}, s{S_FT}, 7\ns_lshr_b32 s{T0}, s{I}, 2\ns_add_u32 s{S_FT}, s{S_FT}, s{T0}")
    e(f"s_and_b32 s{S_KH}, s{X}, 1")
    e(f"s_bfe_u32 s{S_ST}, s{X}, 0x10001\ns_lshl_b32 s{S_ST}, s{S_ST}, 3\ns_and_b32 s{T0}, s{I}, 7\ns_add_u32 s{S_ST}, s{S_ST}, s{T0}")
    e(f"s_lshr_b32 s{S_DT2}, s{X}, 2\ns_lshl_b32 s{S_DT2}, s{S_DT2}, 2\ns_lshr_b32 s{T0}, s{I}, 3\ns_add_u32 s{S_DT2}, s{S_DT2}, s{T0}")
    e("s_waitcnt lgkmcnt(0)")
    e(f"s_cmp_lt_u32 s{S_WAVE}, 4\ns_cbranch_scc1 L_compute")
    loader(e)
    e("L_compute:")
    compute(e)
    e("L_end:\ns_endpgm")
    e(f""".section .rodata,"a"
.p2align 6
.amdhsa_kernel {name}
  .amdhsa_next_free_vgpr 256
  .amdhsa_next_free_sgpr 102
  .amdhsa_accum_offset 256
  .amdhsa_group_segment_fixed_size 0
  .amdhsa_kernarg_size 136
  .amdhsa_user_sgpr_count 2
  .amdhsa_user_sgpr_kernarg_segment_ptr 1
  .amdhsa_system_sgpr_workgroup_id_x 1
  .amdhsa_float_denorm_mode_32 3
.end_amdhsa_kernel""")


def main(path):
    ref = open(f"cdna_kernels/{NAME}.s.ref").read().splitlines()
    hdr = [l for l in ref if l.startswith(";") and "@launch" not in l and "Override" not in l and "grid=ceil" not in l][:18]
    e = E()
    gen(e)
    out = "\n".join(hdr) + "\n"
    if "list" in OPT:
        out += f"; @launch kernel={NAME}_kernel grid=(256,1,1) block=(512,1,1) lds={NS*STG+16384+256}\n"
    else:
        out += f"; @launch grid=(256,1,1) block=(512,1,1) lds={NS*STG+16384+256}\n"
    out += '.amdgcn_target "amdgcn-amd-amdhsa--gfx950"\n.text\n'
    out += "\n".join(l for l in e.L if l) + "\n"
    open(path, "w").write(out)


if __name__ == "__main__":
    main(sys.argv[1] if len(sys.argv) > 1 else f"cdna_kernels/{NAME}.s")
```

```python
import sys, struct, math, os

NAME = "parallel_sum__ssm_conv_s5__mixer_token_mlp__prompt"
MB = 1 << 20
WS_XN, WS_HH, WS_U, WS_HP = 0, 4 * MB, 8 * MB, 16 * MB
WS_ST = 24 * MB
WS_AGG = 24 * MB + 131072
WS_FLG = 25 * MB
F_AGG, F_H, F_U, F_X = 0, 4096, 8192, 12288
WS_XCH = 32 * MB
WS_TS = 48 * MB

NS = int(os.environ.get("NS", 4))
STG = 32768
KO = int(os.environ.get("KO", 32))
RCT = int(os.environ.get("RCT", 6))
BUD = int(os.environ.get("BUD", 24))
BUDG = int(os.environ.get("BUDG", 40))
OPT = set(os.environ.get("OPT", "").split(","))
SLP = int(os.environ.get("SLP", 8))
TMO = 0x8000
LNL = NS * STG
VPV, VPO = 38, 39
ARR = int(os.environ.get("ARR", 4))
SKA = int(os.environ.get("SKA", 3))
SKB = int(os.environ.get("SKB", 2))
NPF = 0
LGAP = int(os.environ.get("LGAP", 1))
NTS_ = int(os.environ.get("NTS", 18))
PF0 = int(os.environ.get("PF0", 0))
PFD = int(os.environ.get("PFD", 2))
PFW = int(os.environ.get("PFW", 24))
PFM = os.environ.get("PFM", "")
OUTM = os.environ.get("OUTM", "")

P = dict(x=4, lre=6, lim=8, bre=10, bim=12, cre=14, cim=16, ldt=18, dsk=20, w1=24, b1=26, w2=28, b2=30,
         out=32, dbg=34, ws=36)
S_WAVE, S_XCD, S_IDX = 38, 39, 40
S_LT, S_PT, S_DT1, S_FT, S_KH, S_ST, S_DT2 = 41, 42, 43, 44, 45, 46, 47
T0, T1, T2, T3 = 48, 49, 50, 51
S_CNT, S_SLOT, S_A, S_B = 52, 53, 54, 55
ACB, ACM = 128, 192
AR, AI, CR, CI = 8, 9, 10, 11
P32R, P32I, P64R, P64I, PKR, PKI = 12, 13, 14, 15, 30, 31
LOR, LOI = 32, 33
VP, VC8 = 6, 7
S_G32, S_CH = 79, 80
S_FA, S_FHo, S_FUo, S_FXo, S_FXr = 76, 77, 78, 3, 54
SR_AGG, SR_FLG, SR_HP, SR_U, SR_B1, SR_DBG = 56, 60, 64, 68, 72, 84
S_WM, S_WN = 22, 23


def f2u(x):
    return struct.unpack('<I', struct.pack('<f', x))[0]


class E:
    def __init__(s):
        s.L = []
        s.n = 0

    def __call__(s, t):
        s.L.append(t)

    def lab(s, p="L"):
        s.n += 1
        return f"{p}_{s.n}"


def srd_s(sd, ptr, off, size):
    lo = P[ptr] if isinstance(ptr, str) else ptr
    if off:
        t = f"s_add_u32 s{sd}, s{lo}, 0x{off:x}\ns_addc_u32 s{sd+1}, s{lo+1}, 0\n"
    else:
        t = f"s_mov_b32 s{sd}, s{lo}\ns_mov_b32 s{sd+1}, s{lo+1}\n"
    return t + f"s_mov_b32 s{sd+2}, 0x{size:x}\ns_mov_b32 s{sd+3}, 0x20000"


def srd(e, sd, ptr, off, size):
    e(srd_s(sd, ptr, off, size))


DPP = "row_mask:0xf bank_mask:0xf"
NTS = [0]


def ts(e):
    if "ts" in OPT:
        assert NTS[0] < 10
        e(f"{'s_memrealtime' if 'tr' in OPT else 's_memtime'} s[88:89]\ns_waitcnt lgkmcnt(0)\ns_mov_b32 s{90+NTS[0]}, s88")
        NTS[0] += 1


def rts(e, n):
    if "ts" in OPT:
        e(f"s_memrealtime s[88:89]\ns_waitcnt lgkmcnt(0)\ns_mov_b32 s{100+n}, s88")


def ts_store(e):
    if "ts" in OPT:
        e("s_waitcnt vmcnt(0)")
        rts(e, 1)
        srd(e, 60, 'ws', WS_TS, MB)
        e(f"s_lshl_b32 s{T0}, s2, 3\ns_add_u32 s{T0}, s{T0}, s{S_WAVE}\ns_lshl_b32 s{T0}, s{T0}, 6\nv_mov_b32 v2, 0")
        for i in range(10):
            e(f"v_mov_b32 v3, s{90+i}\nbuffer_store_dword v3, v2, s[60:63], s{T0} offen offset:{4*i}")
        for i in range(2):
            e(f"v_mov_b32 v3, s{100+i}\nbuffer_store_dword v3, v2, s[60:63], s{T0} offen offset:{56+4*i}")


def rbf(v):
    return f"v_cvt_pk_bf16_f32 v{v}, v{v}, v{v}\nv_lshlrev_b32 v{v}, 16, v{v}"


def zipemit(e, streams):
    ls = [("\n".join(s)).split("\n") for s in streams]
    n = max(len(x) for x in ls)
    for i in range(n):
        for x in ls:
            if i < len(x):
                e(x[i])


def ln_rows(e):
    srd(e, 56, 'x', 0, 4 * MB)
    e(f"s_cmp_lt_u32 s2, 128\ns_cselect_b32 s60, s{P['bre']}, s{P['bim']}\ns_cselect_b32 s61, s{P['bre']+1}, s{P['bim']+1}")
    e(f"s_mov_b32 s62, 0x{2*MB:x}\ns_mov_b32 s63, 0x20000")
    e("v_lshlrev_b32 v2, 4, v1")
    e(f"s_lshl_b32 s{T0}, s2, 3\ns_lshl_b32 s{T1}, s{S_WAVE}, 1\ns_add_u32 s{T0}, s{T0}, s{T1}\ns_lshl_b32 s{T0}, s{T0}, 11")
    for r in range(2):
        b = 8 + 48 * r
        e(f"buffer_load_dwordx4 v[{b}:{b+3}], v2, s[56:59], s{T0} offen offset:{2048*r}")
        e(f"buffer_load_dwordx4 v[{b+4}:{b+7}], v2, s[56:59], s{T0} offen offset:{2048*r+1024}")
    flag_offsets(e)
    srd(e, 64, 'lre', 0, 2048)
    srd(e, 68, 'lim', 0, 2048)
    srd(e, 72, 'ldt', 0, 2048)
    e(f"v_and_b32 v3, 31, v1\nv_lshlrev_b32 v{VC8}, 3, v3\nv_add_u32 v{VP}, s{S_G32}, v3\nv_lshlrev_b32 v4, 1, v{VP}")
    e("buffer_load_ushort v100, v4, s[64:67], 0 offen\nbuffer_load_ushort v101, v4, s[68:71], 0 offen\nbuffer_load_ushort v102, v4, s[72:75], 0 offen")
    srd(e, 64, 'b2', 0, 4096)
    e(f"s_lshr_b32 s{T1}, s{T0}, 10\nv_mov_b32 v4, 0\nbuffer_load_dword v103, v4, s[64:67], s{T1} offen")
    e(f"s_and_b32 s{T1}, s{T0}, 0x{2*MB-1:x}")
    for i in range(4):
        e(f"buffer_load_dwordx4 v[{104+4*i}:{107+4*i}], v2, s[60:63], s{T1} offen offset:{1024*i}")
    srd(e, 68, 'ws', WS_FLG, 16384)
    e(f"v_mov_b32 v3, s{S_FHo}\nv_mov_b32 v4, s{S_FUo}\nv_cmp_eq_u32 vcc, 1, v1\nv_cndmask_b32 v3, v3, v4, vcc")
    e(f"v_mov_b32 v4, s{S_FXo}\nv_cmp_eq_u32 vcc, 2, v1\nv_cndmask_b32 v3, v3, v4, vcc")
    e(f"v_mov_b32 v4, s{S_FA}\nv_cmp_eq_u32 vcc, 3, v1\nv_cndmask_b32 v3, v3, v4, vcc\nv_mov_b32 v4, 0")
    e(f"s_mov_b64 exec, 15\nbuffer_store_dword v4, v3, s[68:71], 0 offen sc1\ns_mov_b64 exec, -1")
    srd(e, 64, 'ws', WS_HH, 4 * MB)
    srd(e, 68, 'ws', WS_ST, 65536)
    e(f"s_mov_b32 s{T1}, 0xffff0000")
    e("s_waitcnt vmcnt(9)")

    def allreduce(v, t):
        return [f"s_nop 1\nv_add_f32 v{v}, v{v}, v{v} quad_perm:[1,0,3,2] {DPP}",
                f"s_nop 1\nv_add_f32 v{v}, v{v}, v{v} quad_perm:[2,3,0,1] {DPP}",
                f"s_nop 1\nv_add_f32 v{v}, v{v}, v{v} row_half_mirror {DPP}",
                f"s_nop 1\nv_add_f32 v{v}, v{v}, v{v} row_mirror {DPP}",
                f"v_mov_b32 v{t}, v{v}\ns_nop 1\nv_permlane16_swap_b32 v{t}, v{v}\ns_nop 1\nv_add_f32 v{v}, v{v}, v{t}",
                f"v_mov_b32 v{t}, v{v}\ns_nop 1\nv_permlane32_swap_b32 v{t}, v{v}\ns_nop 1\nv_add_f32 v{v}, v{v}, v{t}"]

    def ln_pass(F, out, tmp):
        S, T, M, Q = tmp, tmp + 1, tmp + 2, tmp + 3
        L = [f"v_add_f32 v{S}, v{F}, v{F+1}"]
        L += [f"v_add_f32 v{S}, v{S}, v{F+i}" for i in range(2, 16)]
        L += allreduce(S, T)
        L += [f"v_mul_f32 v{M}, 0x{f2u(1/1024):x}, v{S}", f"v_sub_f32 v{T}, v{F}, v{M}\nv_mul_f32 v{Q}, v{T}, v{T}"]
        L += [f"v_sub_f32 v{T}, v{F+i}, v{M}\nv_fmac_f32 v{Q}, v{T}, v{T}" for i in range(1, 16)]
        L += allreduce(Q, T)
        L += [f"v_mul_f32 v{Q}, 0x{f2u(1/1024):x}, v{Q}", rbf(Q), f"v_add_f32 v{Q}, 0x{f2u(1e-5):x}, v{Q}", rbf(Q),
              f"v_sqrt_f32 v{Q}, v{Q}\ns_nop 0", rbf(Q), f"v_rcp_f32 v{Q}, v{Q}", rbf(M)]
        for i in range(8):
            a, b = F + 2 * i, F + 2 * i + 1
            L += [f"v_sub_f32 v{a}, v{a}, v{M}\nv_sub_f32 v{b}, v{b}, v{M}\nv_cvt_pk_bf16_f32 v{T}, v{a}, v{b}",
                  f"v_lshlrev_b32 v{a}, 16, v{T}\nv_and_b32 v{b}, s{T1}, v{T}",
                  f"v_mul_f32 v{a}, v{a}, v{Q}\nv_mul_f32 v{b}, v{b}, v{Q}\nv_cvt_pk_bf16_f32 v{out+i}, v{a}, v{b}",
                  f"v_lshlrev_b32 v{a}, 16, v{out+i}\nv_and_b32 v{b}, s{T1}, v{out+i}"]
        return L

    st = []
    for r in range(2):
        b = 8 + 48 * r
        F = b + 8
        L = [f"v_lshlrev_b32 v{F+2*i}, 16, v{b+i}\nv_and_b32 v{F+2*i+1}, s{T1}, v{b+i}" for i in range(8)]
        L += ln_pass(F, b + 24, b + 40)
        L += [f"v_mov_b32 v{120+r}, v{b+42}\nv_mov_b32 v{122+r}, v{b+43}"]
        L += ln_pass(F, b + 32, b + 40)
        L += [f"ds_write_b128 v3, v[{b+32}:{b+35}] offset:{2048*r}", f"ds_write_b128 v3, v[{b+36}:{b+39}] offset:{2048*r+1024}"]
        st.append(L)
    e(f"s_lshl_b32 s{T2}, s{S_WAVE}, 12\ns_add_u32 s{T2}, s{T2}, 0x{LNL:x}\nv_add_u32 v3, s{T2}, v2")
    zipemit(e, st)
    e("s_waitcnt vmcnt(1)")
    st = []
    for r in range(2):
        b, S, T = 104 + 8 * r, 124 + r, 8 + r
        L = [f"v_lshlrev_b32 v{S}, 16, v{b}\nv_and_b32 v{T}, s{T1}, v{b}\nv_add_f32 v{S}, v{S}, v{T}"]
        for i in range(1, 8):
            L += [f"v_lshlrev_b32 v{T}, 16, v{b+i}\nv_add_f32 v{S}, v{S}, v{T}\nv_and_b32 v{T}, s{T1}, v{b+i}\nv_add_f32 v{S}, v{S}, v{T}"]
        L += allreduce(S, T)
        st.append(L)
    zipemit(e, st)
    e(f"v_lshrrev_b32 v8, 16, v120\nv_lshl_or_b32 v8, v103, 16, v8\nv_lshrrev_b32 v9, 16, v121\nv_and_or_b32 v9, v103, s{T1}, v9")
    e(f"v_cmp_eq_u32 vcc, 1, v1\nv_cndmask_b32 v8, v8, v9, vcc\nv_cndmask_b32 v9, v122, v123, vcc")
    e(f"s_lshl_b32 s{T2}, s{S_WAVE}, 4\ns_add_u32 s{T2}, s{T2}, 0x{LNL+16384+128:x}\nv_lshlrev_b32 v4, 3, v1\nv_add_u32 v4, s{T2}, v4")
    e(f"s_mov_b64 exec, 3\nds_write_b64 v4, v[8:9]\ns_mov_b64 exec, -1")
    for i in range(1, 6):
        e(f"v_cmp_eq_u32 vcc, {i}, v1\nv_cndmask_b32 v120, v120, v{120+i}, vcc")
    e(f"v_lshrrev_b32 v4, 1, v1\nv_lshlrev_b32 v4, 5, v4\nv_and_b32 v5, 1, v1\nv_lshl_add_u32 v4, v5, 2, v4")
    e(f"s_lshl_b32 s{T2}, s{S_WAVE}, 3\ns_add_u32 s{T2}, s{T2}, 0x{LNL+16384:x}\nv_add_u32 v4, s{T2}, v4")
    e(f"s_mov_b64 exec, 63\nds_write_b32 v4, v120\ns_mov_b64 exec, -1")
    e("v_and_b32 v3, 0xc3, v0\nv_bfe_u32 v5, v0, 3, 2\nv_lshl_add_u32 v3, v5, 2, v3\nv_bfe_u32 v5, v0, 5, 1\nv_lshl_add_u32 v3, v5, 4, v3")
    e(f"v_bfe_u32 v5, v0, 2, 1\nv_lshl_add_u32 v3, v5, 5, v3\nv_lshlrev_b32 v3, 1, v3\nv_add_u32 v3, 0x{LNL:x}, v3")
    e(f"v_lshlrev_b32 v4, 2, v1\nv_add_u32 v5, 0x{LNL+16384:x}, v4")
    e("s_waitcnt lgkmcnt(0)\ns_barrier")
    for it in range(4):
        for i in range(4):
            e(f"ds_read_u16 v{8+4*it+i}, v3 offset:{2*i*2048+512*it}")
            e(f"ds_read_u16 v{24+4*it+i}, v3 offset:{(2*i+1)*2048+512*it}")
    e("ds_read_b32 v40, v5")
    e(f"s_lshl_b32 s{T0}, s2, 14\nv_lshlrev_b32 v3, 4, v0\ns_lshl_b32 s{T1}, s2, 8")
    for it in range(4):
        e(f"s_waitcnt lgkmcnt({min(15, 8*(3-it)+1)})")
        for i in range(4):
            e(f"v_lshl_or_b32 v{8+4*it+i}, v{24+4*it+i}, 16, v{8+4*it+i}")
        e(f"buffer_store_dwordx4 v[{8+4*it}:{11+4*it}], v3, s[64:67], s{T0} offen sc1\ns_add_u32 s{T0}, s{T0}, 4096")
    e("s_waitcnt lgkmcnt(0)")
    e(w0(e, f"buffer_store_dword v40, v4, s[68:71], s{T1} offen sc1"))
    if NPF:
        srd(e, 56, 'w1', 0, 2048 * 3584 * 2)
        e(f"s_lshl_b32 s{T3}, s2, 2\ns_add_u32 s{T3}, s{T3}, s{S_WAVE}\ns_lshl_b32 s{T3}, s{T3}, 10")
        for i in range(NPF):
            e(f"buffer_load_dwordx4 v[112:115], v2, s[56:59], s{T3} offen\ns_add_u32 s{T3}, s{T3}, 0x{MB:x}")
    srd(e, SR_DBG, 'dbg', 0, 256)
    e("v_lshlrev_b32 v48, 16, v100\nv_lshlrev_b32 v49, 16, v101\nv_lshlrev_b32 v50, 16, v102")
    L2E = f"0x{f2u(math.log2(math.e)):x}"
    e(f"v_mul_f32 v50, {L2E}, v50\nv_exp_f32 v50, v50\ns_nop 0")
    e(rbf(50))
    e("v_mul_f32 v51, v50, v48\nv_mul_f32 v52, v50, v49")
    e(f"v_mul_f32 v51, {L2E}, v51\nv_exp_f32 v51, v51")
    e(f"v_mul_f32 v52, 0x{f2u(1/(2*math.pi)):x}, v52\nv_rndne_f32 v53, v52\nv_sub_f32 v52, v52, v53")
    e("v_cos_f32 v53, v52\nv_sin_f32 v54, v52\ns_nop 0")
    e(f"v_mul_f32 v{AR}, v51, v53\nv_mul_f32 v{AI}, v51, v54")
    e(f"v_add_f32 v53, -1.0, v{AR}")
    e("v_mul_f32 v54, v48, v48\nv_fmac_f32 v54, v49, v49\nv_rcp_f32 v54, v54")
    e(f"v_mul_f32 v{CR}, v53, v48\nv_fmac_f32 v{CR}, v{AI}, v49")
    e(f"v_mul_f32 v{CI}, v{AI}, v48\nv_fma_f32 v{CI}, -v53, v49, v{CI}")
    e("v_add_f32 v54, v54, v54")
    e(f"v_mul_f32 v{CR}, v{CR}, v54\nv_mul_f32 v{CI}, v{CI}, v54")


def flag_offsets(e):
    e(f"s_lshl_b32 s{T0+2}, s{S_PT}, 1\ns_add_u32 s{T0+2}, s{T0+2}, s{S_WN}\ns_lshl_b32 s{S_G32}, s{T0+2}, 5")
    e(f"s_lshl_b32 s{S_CH}, s{S_LT}, 1\ns_add_u32 s{S_CH}, s{S_CH}, s{S_WM}")
    e(f"s_add_u32 s{S_FA}, s{S_G32}, s{S_CH}\ns_lshl_b32 s{S_FA}, s{S_FA}, 2\ns_add_u32 s{S_FA}, s{S_FA}, {F_AGG}")
    for d, hi, sh, lo, off in ((S_FHo, S_LT, 4, S_PT, F_H), (S_FUo, S_DT1, 5, S_FT, F_U), (S_FXo, S_ST, 3, S_DT2, F_X)):
        e(f"s_lshl_b32 s{d}, s{hi}, {sh}\ns_add_u32 s{d}, s{d}, s{lo}\ns_lshl_b32 s{d}, s{d}, 2\ns_add_u32 s{d}, s{d}, s{S_WAVE}\n"
          f"s_lshl_b32 s{d}, s{d}, 2\ns_add_u32 s{d}, s{d}, {off}")
    e(f"s_cmp_ge_u32 s{S_IDX}, 28\ns_cselect_b32 s{S_FUo}, s{S_FHo}, s{S_FUo}")
    e(f"s_cmp_eq_u32 s{S_KH}, 0\ns_cselect_b32 s{S_FXo}, s{S_FHo}, s{S_FXo}")


LW = 3


def ld_voff_kc(e, vd, s_row0, ld, bcat=False, scan=False, t0=2, t1=3, t2=4):
    e(f"v_lshrrev_b32 v{t0}, 3, v1\nv_and_b32 v{t1}, 7, v1\nv_lshrrev_b32 v{t2}, 4, v1\nv_xor_b32 v{t1}, v{t1}, v{t2}")
    if bcat:
        e(f"s_lshr_b32 s{T0}, s{LW}, 1\ns_lshl_b32 s{T0}, s{T0}, 5\ns_add_u32 s{T0}, s{T0}, s{s_row0}")
    else:
        e(f"s_lshl_b32 s{T0}, s{LW}, 5\ns_add_u32 s{T0}, s{T0}, s{s_row0}")
    e(f"v_add_u32 v{t0}, s{T0}, v{t0}")
    if scan:
        e(f"s_and_b32 s{T0}, s{LW}, 1\ns_lshl_b32 s{T0}, s{T0}, 2\nv_xor_b32 v{t1}, s{T0}, v{t1}")
    e(f"s_mov_b32 s{T0}, {ld}")
    for q in range(4):
        e(f"v_xor_b32 v{t2}, {0 if scan else 4*(q&1)}, v{t1}\nv_add_u32 v{vd+q}, {8*q}, v{t0}")
        e(f"v_mul_lo_u32 v{vd+q}, v{vd+q}, s{T0}\nv_lshl_add_u32 v{vd+q}, v{t2}, 4, v{vd+q}")
        if q:
            e(f"v_subrev_u32 v{vd+q}, {1024*q}, v{vd+q}")


def ld_voff_kb(e, vd, s_row0, R, t0=2):
    e(f"v_add_u32 v{t0}, s{s_row0}, v1\nv_lshlrev_b32 v{t0}, 4, v{t0}\ns_mul_i32 s{T0}, s{LW}, {2*R*16}\nv_add_u32 v{t0}, s{T0}, v{t0}")
    for q in range(4):
        e(f"v_add_u32 v{vd+q}, 0x{(q>>1)*R*16 + (q&1)*1024 + 4096 - q*1024:x}, v{t0}")


def ld_voff_kt(e, vd, s_tile, t0=2):
    e(f"s_lshl_b32 s{T0}, s{s_tile}, 14\ns_lshl_b32 s{T1}, s{LW}, 12\ns_add_u32 s{T0}, s{T0}, s{T1}")
    for q in range(4):
        e(f"v_xor_b32 v{t0}, {q<<2}, v1\nv_lshlrev_b32 v{t0}, 4, v{t0}\nv_add_u32 v{vd+q}, s{T0}, v{t0}")


def ld_voff_ks(e, vd, s_n0, ld, t0=2, t1=3, t2=4):
    e(f"v_lshrrev_b32 v{t0}, 4, v1\nv_and_b32 v{t1}, 15, v1\nv_lshlrev_b32 v{t2}, 2, v{t0}\nv_xor_b32 v{t1}, v{t1}, v{t2}")
    e(f"s_lshl_b32 s{T0}, s{LW}, 4\nv_add_u32 v{t0}, s{T0}, v{t0}")
    e(f"s_lshl_b32 s{T1}, s{s_n0}, 1\nv_lshlrev_b32 v{t1}, 4, v{t1}\nv_add_u32 v{t1}, s{T1}, v{t1}")
    e(f"s_mov_b32 s{T0}, {ld}")
    for q in range(4):
        e(f"v_add_u32 v{vd+q}, {4*q}, v{t0}\nv_mul_lo_u32 v{vd+q}, v{vd+q}, s{T0}\nv_add_u32 v{vd+q}, v{vd+q}, v{t1}")
        if q:
            e(f"v_subrev_u32 v{vd+q}, {1024*q}, v{vd+q}")


S_M0B = 18
S_LD = 78
LB = 64
LR = 128


class Seg:
    def __init__(s, n, va, sa, dA, dB, init):
        s.n, s.va, s.sa, s.dA, s.dB, s.init = n, va, sa, dA, dB, init


class Ld:
    def __init__(s, e):
        s.e = e
        s.ops = 0
        s.end = {}

    def issue(s, st, sg, j):
        e = s.e
        if j == 0:
            e(sg.init)
        if "nodma" not in OPT:
            e(f"s_mov_b32 m0, s{S_SLOT}\ns_add_u32 s{T0}, s{S_SLOT}, 16384")
            for q in range(4):
                e(f"buffer_load_dwordx4 v{sg.va+q}, s[{sg.sa}:{sg.sa+3}], s{S_A} offen offset:{q*1024} lds")
            e(f"s_mov_b32 m0, s{T0}\ns_nop 0")
            for q in range(4):
                e(f"buffer_load_dwordx4 v{sg.va+4+q}, s[{sg.sa+4}:{sg.sa+7}], s{S_B} offen offset:{q*1024} lds")
            s.ops += 8
        e(f"s_add_u32 s{S_A}, s{S_A}, 0x{sg.dA:x}\ns_add_u32 s{S_B}, s{S_B}, 0x{sg.dB:x}")
        e(f"s_add_u32 s{S_SLOT}, s{S_SLOT}, {STG}\ns_cmp_ge_u32 s{S_SLOT}, {NS*STG}\ns_cselect_b32 s{S_SLOT}, s{S_M0B}, s{S_SLOT}")
        s.end[st] = s.ops

    def extra(s, code):
        s.e(code)
        s.ops += code.count("buffer_")

    def bar(s, st):
        s.e(f"s_waitcnt vmcnt({min(63, s.ops - s.end[st])})\ns_barrier")

    def run(s, stages, b0, b1, pre={}, post={}):
        for b in range(b0, b1):
            s.bar(b)
            if b in pre:
                pre[b]()
            n = b + NS - 1
            if n < len(stages):
                s.issue(n, *stages[n])
            if b in post:
                post[b]()

    def copy(s):
        c = Ld(s.e)
        c.ops, c.end = s.ops, dict(s.end)
        return c


def base_units():
    SX, SR, SD = 56, 60, 64
    L = [srd_s(SX, 'x', 0, 4 * MB), srd_s(SR, 'ws', WS_ST, 65536), srd_s(SD, 'dsk', 0, 2048)]
    L += row_voff(1, 79)
    L.append(f"v_lshlrev_b32 v4, 3, v4\nv_lshrrev_b32 v5, 4, v1\nv_lshlrev_b32 v5, 3, v5\ns_mov_b32 s68, 0xffff0000")
    L.append(f"s_lshl_b32 s{T3}, s{S_DT2}, 1\ns_add_u32 s{T3}, s{T3}, s{S_WM}\ns_lshl_b32 s{T3}, s{T3}, 7\n"
             f"buffer_load_dwordx2 v[46:47], v4, s[{SD}:{SD+3}], s{T3} offen")
    L.append(f"s_lshl_b32 s{T3}, s{S_ST}, 1\ns_add_u32 s{T3}, s{T3}, s{S_WN}\ns_lshl_b32 s{T3}, s{T3}, 11")
    for i in range(16):
        b = LB + 4 * i
        L.append(f"buffer_load_dwordx2 v[{b}:{b+1}], v3, s[{SX}:{SX+3}], s79 offen\ns_add_u32 s79, s79, 8192")
        L.append(f"buffer_load_dwordx2 v[{b+2}:{b+3}], v5, s[{SR}:{SR+3}], s{T3} offen offset:{(i>>1)*256+128+(i&1)*32}")
    loads = "\n".join(L)
    X, Y, MB_, DS = 48, 52, 56, 44

    def unp(d, a, b):
        return f"v_lshlrev_b32 v{d}, 16, v{a}\nv_and_b32 v{d+1}, s68, v{a}\nv_lshlrev_b32 v{d+2}, 16, v{b}\nv_and_b32 v{d+3}, s68, v{b}"
    cv = f"v_cvt_pk_bf16_f32 v4, v{Y}, v{Y+1}\nv_cvt_pk_bf16_f32 v5, v{Y+2}, v{Y+3}\n" + unp(Y, 4, 5)
    G = []
    for i in range(16):
        b = LB + 4 * i
        U = []
        if i == 0:
            U.append("v_lshlrev_b32 v44, 16, v46\nv_and_b32 v45, s68, v46\nv_lshlrev_b32 v46, 16, v47\nv_and_b32 v47, s68, v47")
        U.append(unp(X, b, b + 1))
        U.append(f"v_lshlrev_b32 v{MB_}, 16, v{b+2}\nv_and_b32 v{MB_+1}, s68, v{b+2}")
        U += [f"v_sub_f32 v{Y+k}, v{X+k}, v{MB_}" for k in range(4)] + [cv]
        U += [f"v_mul_f32 v{Y+k}, v{Y+k}, v{b+3}" for k in range(4)] + [cv]
        U += [f"v_mul_f32 v{Y+k}, v{Y+k}, v{DS+k}" for k in range(4)] + [cv]
        U += [f"v_add_f32 v{X+k}, v{X+k}, v{MB_+1}" for k in range(4)]
        U += [f"v_add_f32 v{b+k}, v{X+k}, v{Y+k}" for k in range(4)]
        G.append("\n".join(U))
    return loads, G


def rows_addr(e, w):
    e(f"s_mul_i32 s{T0}, s{w}, {64*272}\nv_lshrrev_b32 v6, 4, v1\nv_mul_u32_u24 v6, 272, v6\nv_and_b32 v7, 15, v1\nv_lshl_add_u32 v6, v7, 4, v6\nv_add_u32 v6, s{T0}, v6")


def rows_final(e, store):
    for i in range(16):
        e(f"ds_read_b128 v[{LR+4*i}:{LR+4*i+3}], v6 offset:{i*4*272}")
    e("s_waitcnt vmcnt(0)")
    for i in range(16):
        a = 4 * i
        e(f"s_waitcnt lgkmcnt({15-i})")
        e(f"v_pk_add_f32 v[{LR+a}:{LR+a+1}], v[{LR+a}:{LR+a+1}], v[{LB+a}:{LB+a+1}]\nv_pk_add_f32 v[{LR+a+2}:{LR+a+3}], v[{LR+a+2}:{LR+a+3}], v[{LB+a+2}:{LB+a+3}]")
        e(store(i))


def loader(e):
    e(f"s_sub_u32 s{LW}, s{S_WAVE}, 4\ns_lshl_b32 s{S_M0B}, s{LW}, 12\ns_mov_b32 s{S_SLOT}, s{S_M0B}")
    e(f"s_lshr_b32 s{S_WM}, s{LW}, 1\ns_and_b32 s{S_WN}, s{LW}, 1")
    z = f"s_mov_b32 s{S_A}, 0\ns_mov_b32 s{S_B}, 0"
    bu = Seg(16, 8, 56, 128, 128, z)
    m1 = Seg(32, 16, 64, 64 * 7168, 8 * 1024 * 16, z)
    ch = Seg(16, 24, 72, 128, 64 * 4096, f"s_mov_b32 s{S_A}, 0\ns_lshl_b32 s{S_B}, s{S_KH}, 22")
    uw = Seg(0, 32, 80, 8 * 1024 * 16, 64 * 4096, f"s_mul_i32 s{S_A}, s{S_KH}, 0x{KO*8*1024*16:x}\ns_mul_i32 s{S_B}, s{S_KH}, 0x{KO*64*4096:x}")

    def org(t, sh):
        e(f"s_lshl_b32 s{T3}, s{t}, {sh}")
        return T3
    srd(e, 56, 'x', 0, 4 * MB)
    e(f"s_and_b32 s{T0}, s{LW}, 1\ns_cmp_eq_u32 s{T0}, 0\ns_cselect_b32 s60, s{P['bre']}, s{P['bim']}\ns_cselect_b32 s61, s{P['bre']+1}, s{P['bim']+1}")
    e(f"s_mov_b32 s62, 0x{2*MB:x}\ns_mov_b32 s63, 0x20000")
    ld_voff_kc(e, 8, org(S_LT, 7), 2048, scan=True)
    ld_voff_kc(e, 12, org(S_PT, 6), 2048, bcat=True)
    ld = Ld(e)
    stA = [(bu, j) for j in range(16)]
    for j in range(NS - 1):
        ld.issue(j, bu, j)
    srd(e, 64, 'w1', 0, 2048 * 3584 * 2)
    srd(e, 68, 'ws', WS_HH - 4096, 4 * MB + 4096)
    ld_voff_ks(e, 16, org(S_FT, 7), 7168)
    ld_voff_kb(e, 20, org(S_DT1, 7), 1024)
    e(f"s_cmp_eq_u32 s{S_KH}, 0\ns_cselect_b32 s72, s{P['cre']}, s{P['cim']}\ns_cselect_b32 s73, s{P['cre']+1}, s{P['cim']+1}")
    e(f"s_mov_b32 s74, 0x{2*MB:x}\ns_mov_b32 s75, 0x20000")
    srd(e, 76, 'ws', WS_HP, 8 * MB)
    srd(e, 80, 'ws', WS_U - 4096, 1024 * 3584 * 2 + 4096)
    srd(e, 84, 'w2', 0, 3584 * 2048 * 2)
    ld_voff_kc(e, 24, org(S_DT2, 7), 2048, scan=True)
    ld_voff_kt(e, 28, S_ST)
    ld_voff_kb(e, 32, org(S_DT2, 7), 1024)
    ld_voff_ks(e, 36, org(S_ST, 7), 4096)
    e("v_lshlrev_b32 v2, 4, v1")
    e(f"s_lshl_b32 s{S_CNT}, s2, 2\ns_add_u32 s{S_CNT}, s{S_CNT}, s{LW}\ns_lshl_b32 s{S_CNT}, s{S_CNT}, 10")
    e("s_barrier")
    pfp = {}
    if "nopf" not in OPT:
        for i in range(14):
            pfp[PF0 + i * PFD // 2] = pfp.get(PF0 + i * PFD // 2, 0) + 1

    def pf(l, b):
        return lambda: l.extra("\n".join([f"buffer_load_dwordx4 v[40:43], v2, s[64:67], s{S_CNT} offen {PFM}\ns_add_u32 s{S_CNT}, s{S_CNT}, 0x{MB:x}"] * pfp[b]))
    nbu = 16 - NS + 1
    ld.run(stA, 0, nbu, post={b: pf(ld, b) for b in pfp if b < nbu})
    spare, common = e.lab("Lsp"), e.lab("Lcm")
    e(f"s_cmp_ge_u32 s{S_IDX}, 28\ns_cbranch_scc1 {spare}")
    sp = ld.copy()
    stB = stA + [(m1, j) for j in range(32)] + [(ch, j) for j in range(NS - 1)]
    assert max(pfp, default=0) < 40
    ld.run(stB, nbu, 48, post={b: pf(ld, b) for b in pfp if b >= nbu})
    e(f"s_branch {common}")
    e(f"{spare}:")
    rest = sum(v for b, v in pfp.items() if b >= nbu)
    sp.run(stA, nbu, 16)
    e("s_barrier")
    if "nopf" not in OPT:
        for i in range(rest):
            e(f"buffer_load_dwordx4 v[40:43], v2, s[64:67], s{S_CNT} offen {PFM}\ns_add_u32 s{S_CNT}, s{S_CNT}, 0x{MB:x}")
        e(f"s_sub_u32 s{T3}, s{S_IDX}, 28\ns_lshl_b32 s{T3}, s{T3}, 3\ns_add_u32 s{T3}, s{T3}, s{S_XCD}\ns_lshl_b32 s{T3}, s{T3}, 2\ns_add_u32 s{T3}, s{T3}, s{LW}\ns_lshl_b32 s{T3}, s{T3}, 10")
        for nm, sz in (('cre', 2 * MB), ('cim', 2 * MB), ('w2', 3584 * 2048 * 2)):
            srd(e, 56, nm, 0, sz)
            l = e.lab("Lpf")
            e(f"s_mov_b32 s{T2}, s{T3}\ns_mov_b32 s{S_CNT}, {sz//(4*131072)}\n{l}:")
            for i in range(4):
                e(f"buffer_load_dwordx4 v[40:43], v2, s[56:59], s{T2} offen {PFM}\ns_add_u32 s{T2}, s{T2}, 0x20000")
            e(f"s_waitcnt vmcnt({PFW})\ns_sub_u32 s{S_CNT}, s{S_CNT}, 1\ns_cmp_lg_u32 s{S_CNT}, 0\ns_cbranch_scc1 {l}")
    e("s_barrier")
    ld = Ld(e)
    for j in range(NS - 1):
        ld.issue(j, ch, j)
    e(f"{common}:")
    stC = [(ch, j) for j in range(16)]
    ld.run(stC, 0, nbu)
    snd = e.lab("Lls")
    e(f"s_lshl_b32 s{T3}, s{S_ST}, 3\ns_add_u32 s{T3}, s{T3}, s{S_DT2}\ns_lshl_b32 s{T3}, s{T3}, 2\ns_add_u32 s{T3}, s{T3}, s{LW}\n"
      f"s_lshl_b32 s{S_CNT}, s{T3}, 14\ns_lshl_b32 s{T3}, s{T3}, 2\ns_add_u32 s{T3}, s{T3}, {F_X}\nv_mov_b32 v{VPO+20}, s{T3}")
    rows_addr(e, LW)
    e(f"s_cmp_eq_u32 s{S_KH}, 1\ns_cbranch_scc1 {snd}")
    sd = ld.copy()
    T = 16 + KO
    st = stC + [(uw, j) for j in range(KO)]
    srd(e, 56, 'ws', WS_XCH, 8 * MB)
    srd(e, 60, 'ws', WS_FLG, 16384)
    srd(e, 64, 'out', 0, 8 * MB)
    for u in row_voff(2, 79):
        e(u)
    smp = f"buffer_load_dword v{VPV+20}, v{VPO+20}, s[60:63], 0 offen sc1"
    pl = ""
    for i in range(16):
        pl += f"buffer_load_dwordx4 v[{LB+4*i}:{LB+4*i+3}], v2, s[56:59], s{S_CNT} offen offset:{(i%4)*1024}\n"
        if i % 4 == 3:
            pl += f"s_add_u32 s{S_CNT}, s{S_CNT}, 4096\n"
    tst = f"v_cmp_ne_u32 vcc, 1, v{VPV+20}\ns_nop 1\ns_cbranch_vccz "
    ld.run(st, nbu, T - NS + 1, pre={T - 2 * NS + 1: lambda: ld.extra(smp)})
    early, mid, fin = e.lab("Lxe"), e.lab("Lxm"), e.lab("Lxf")
    e(tst + early)
    l2 = ld.copy()
    ld.extra(smp)
    ld.run(st, T - NS + 1, T - 1)
    e("s_waitcnt vmcnt(0)\ns_barrier")
    e(tst + mid)
    e(smp + "\ns_barrier")
    lp = e.lab("Lxp")
    e(f"s_mov_b32 s{T2}, {TMO*4}\n{lp}:\ns_waitcnt vmcnt(0)\n{tst}{lp}_ok\ns_sleep 2\n{smp}\ns_sub_u32 s{T2}, s{T2}, 1\ns_cbranch_scc0 {lp}\n{lp}_ok:")
    e(pl + f"s_branch {fin}")
    e(f"{mid}:\n{pl}s_barrier\ns_branch {fin}")
    e(f"{early}:")
    l2.extra(pl)
    l2.run(st, T - NS + 1, T)
    e("s_barrier")
    e(f"{fin}:")
    NTS[0] = 5
    ts(e)
    e("s_barrier")
    rows_final(e, lambda i: f"buffer_store_dwordx4 v[{LR+4*i}:{LR+4*i+3}], v3, s[64:67], s79 offen {OUTM}\ns_add_u32 s79, s79, 16384")
    ts(e)
    ts_store(e)
    e("s_endpgm")
    e(f"{snd}:")
    T = 16 + 56 - KO
    st = stC + [(uw, j) for j in range(56 - KO)]
    loads, G = base_units()
    post = {18: lambda: sd.extra(loads)}
    for k in range(8):
        post[22 + k] = (lambda k=k: e(G[2 * k] + "\n" + G[2 * k + 1]))
    sd.run(st, nbu, T, post=post)
    srd(e, 56, 'ws', WS_XCH, 8 * MB)
    srd(e, 60, 'ws', WS_FLG, 16384)
    e("s_barrier")
    NTS[0] = 5
    ts(e)
    e("s_barrier")
    rows_final(e, lambda i: f"buffer_store_dwordx4 v[{LR+4*i}:{LR+4*i+3}], v2, s[56:59], s{S_CNT} offen offset:{(i%4)*1024} sc1" +
               (f"\ns_add_u32 s{S_CNT}, s{S_CNT}, 4096" if i % 4 == 3 else ""))
    e(f"s_waitcnt vmcnt(0)\nv_mov_b32 v3, 1\ns_mov_b64 exec, 1\nbuffer_store_dword v3, v{VPO+20}, s[60:63], 0 offen sc1\ns_mov_b64 exec, -1")
    ts(e)
    ts_store(e)
    e("s_endpgm")
    NTS[0] = 1


class Opnd:
    def __init__(s, mode, lds_off, base, cur, perm):
        s.mode, s.lds_off, s.base, s.cur, s.perm = mode, lds_off, base, cur, perm
        s.nread = 4 if mode in ('KS', 'KT') else 2


def cw_base(e, op, s_wx, t0=2, t1=3, t2=4, t3=5):
    va = op.base
    if op.mode == 'KB':
        e(f"v_and_b32 v{t0}, 31, v1\nv_lshrrev_b32 v{t1}, 5, v1\nv_lshlrev_b32 v{t0}, 4, v{t0}\nv_lshl_add_u32 v{t0}, v{t1}, 11, v{t0}")
        e(f"s_lshl_b32 s{T0}, s{s_wx}, 10\ns_add_u32 s{T0}, s{T0}, {op.lds_off}\nv_add_u32 v{va}, s{T0}, v{t0}")
    elif op.mode == 'KT':
        e(f"v_bfe_u32 v{t0}, v1, 4, 1\nv_bfe_u32 v{t1}, v1, 1, 1\nv_lshl_add_u32 v{t0}, v{t0}, 1, v{t1}")
        e(f"v_bfe_u32 v{t1}, v1, 2, 2\nv_lshrrev_b32 v{t2}, 5, v1\nv_lshl_add_u32 v{t1}, v{t2}, 3, v{t1}")
        e(f"v_lshlrev_b32 v{t2}, 2, v{t0}\nv_xor_b32 v{t1}, v{t1}, v{t2}\nv_lshlrev_b32 v{t1}, 4, v{t1}\nv_lshl_add_u32 v{t1}, v{t0}, 10, v{t1}")
        e(f"v_and_b32 v{t2}, 1, v1\nv_lshl_add_u32 v{t1}, v{t2}, 3, v{t1}")
        e(f"s_lshl_b32 s{T0}, s{s_wx}, 13\ns_add_u32 s{T0}, s{T0}, {op.lds_off}\nv_add_u32 v{va}, s{T0}, v{t1}")
    elif op.mode == 'KC':
        e(f"v_and_b32 v{t0}, 31, v1\nv_lshrrev_b32 v{t1}, 5, v1")
        if op.perm == 'scan':
            e(f"v_bfe_u32 v{t2}, v{t0}, 2, 1\nv_lshlrev_b32 v{t2}, 5, v{t2}\nv_lshrrev_b32 v{t3}, 3, v{t0}")
            e(f"v_lshl_add_u32 v{t2}, v{t3}, 2, v{t2}\nv_and_b32 v{t0}, 3, v{t0}\nv_add_u32 v{t0}, v{t0}, v{t2}")
            e(f"v_bfe_u32 v{t2}, v{t0}, 1, 2\nv_bfe_u32 v{t3}, v{t0}, 5, 1\nv_lshl_add_u32 v{t2}, v{t3}, 2, v{t2}")
        else:
            e(f"v_bfe_u32 v{t2}, v{t0}, 1, 3")
        e(f"s_lshl_b32 s{T0}, s{s_wx}, 6\nv_add_u32 v{t0}, s{T0}, v{t0}")
        e(f"v_xor_b32 v{t1}, v{t1}, v{t2}\nv_lshlrev_b32 v{t1}, 4, v{t1}")
        e(f"v_lshl_add_u32 v{t0}, v{t0}, 7, v{t1}\nv_add_u32 v{va}, {op.lds_off}, v{t0}")
    else:
        e(f"v_bfe_u32 v{t0}, v1, 2, 2\nv_lshrrev_b32 v{t1}, 5, v1\nv_lshl_add_u32 v{t1}, v{t1}, 3, v{t0}\nv_lshlrev_b32 v{t1}, 8, v{t1}")
        if op.perm == 'nat':
            e(f"v_bfe_u32 v{t2}, v1, 4, 1\nv_lshlrev_b32 v{t2}, 5, v{t2}\nv_and_b32 v{t3}, 3, v1\nv_lshl_add_u32 v{t2}, v{t3}, 3, v{t2}")
        else:
            e(f"v_bfe_u32 v{t2}, v1, 4, 1\nv_lshlrev_b32 v{t2}, 5, v{t2}\nv_and_b32 v{t3}, 1, v1\nv_lshl_add_u32 v{t2}, v{t3}, 4, v{t2}")
            e(f"v_bfe_u32 v{t3}, v1, 1, 1\nv_lshl_add_u32 v{t2}, v{t3}, 3, v{t2}")
        e(f"v_add_u32 v{t1}, v{t1}, v{t2}\nv_add_u32 v{t1}, {op.lds_off}, v{t1}")
        e(f"s_lshl_b32 s{T0}, s{s_wx}, 1\nv_xor_b32 v{t2}, s{T0}, v{t0}\nv_lshl_add_u32 v{va}, v{t2}, 6, v{t1}")


def cur_addr(op):
    L = [f"v_add_u32 v{op.cur}, s{S_SLOT}, v{op.base}"]
    if op.mode == 'KC':
        L += [f"v_xor_b32 v{op.cur+kk}, {kk<<5}, v{op.cur}" for kk in range(1, 4)]
    elif op.mode in ('KS', 'KT'):
        L += [f"v_xor_b32 v{op.cur+1}, 64, v{op.cur}"]
    return L


FR = 40


def frag_reads(op, kk, dst):
    R = []
    if "noread" in OPT:
        return R
    for j in range(2):
        d = dst + 4 * j
        if op.mode == 'KB':
            R.append(f"ds_read_b128 v[{d}:{d+3}], v{op.cur} offset:{kk*4096+j*512}")
        elif op.mode == 'KC':
            jo = 2048 if op.perm == 'scan' else 4096
            R.append(f"ds_read_b128 v[{d}:{d+3}], v{op.cur+kk} offset:{j*jo}")
        elif op.mode == 'KT':
            for t in range(2):
                R.append(f"ds_read_b64_tr_b16 v[{d+2*t}:{d+2*t+1}], v{op.cur+t} offset:{kk*256+j*4096}")
        else:
            for t in range(2):
                R.append(f"ds_read_b64_tr_b16 v[{d+2*t}:{d+2*t+1}], v{op.cur+j} offset:{kk*4096+t*1024}")
    return R


def reads(ops, kk):
    A, B = ops
    d = FR + 16 * kk
    a, b = frag_reads(A, kk, d), frag_reads(B, kk, d + 8)
    ha, hb = len(a) // 2, len(b) // 2
    return a[:ha] + b[:hb] + b[hb:] + a[ha:]


def mfmas(acc, kk, zero=False):
    d = FR + 16 * kk
    M = []
    for j in range(2):
        for jn in range(2):
            a = acc + 32 * j + 16 * jn
            M.append(f"v_mfma_f32_32x32x16_bf16 v[{a}:{a+15}], v[{d+4*j}:{d+4*j+3}], v[{d+8+4*jn}:{d+8+4*jn+3}], " + ("0" if zero else f"v[{a}:{a+15}]"))
    if "nomfma" in OPT:
        M = ["s_nop 0"] * 4
    return M


TRANS = ("v_exp_f32", "v_rcp_f32", "v_sqrt_f32", "v_sin_f32", "v_cos_f32", "v_log_f32", "v_mul_lo_u32")


def ucost(u):
    c = 0
    for l in u.split("\n"):
        l = l.strip()
        if not l or l.endswith(":"):
            continue
        if l.startswith("s_cbranch_vccz"):
            break
        c += 8 if l.startswith(TRANS) or l.startswith("buffer_") else 4
    return c


class Side:
    def __init__(s, items=()):
        s.q = list(items)
        s.hold = 0
        s.credit = 0

    def take(s, budget):
        out = []
        if s.hold > 0:
            s.hold -= 1
            return out
        s.credit = min(s.credit + budget, budget + 8)
        while s.q:
            u = s.q[0]
            if isinstance(u, tuple):
                s.q.pop(0)
                s.hold = u[1] * (16 if u[0] == 'skip' else 1)
                s.credit = 0
                break
            c = ucost(u)
            if c > s.credit and (out or c <= 32):
                break
            out.append(s.q.pop(0))
            s.credit -= c
        return out

    def flush(s, e):
        for u in s.q:
            if not isinstance(u, tuple):
                e(u)
        s.q = []


def step(e, cur, nxt, acc, side=None, zero=False, pre=None, post=None):
    nr = cur[0].nread + cur[1].nread

    def inter(M, R):
        per = (len(R) + 3) // 4
        for i in range(4):
            e(M[i])
            rr = R[i * per:(i + 1) * per]
            for r in rr:
                e(r)
            if side is not None:
                rc = sum(8 if r.startswith("ds_read_b128") else RCT if r.startswith("ds_") else 4 for r in rr)
                for u in side.take(max(side.bud - rc, 0)):
                    e(u)

    e(f"s_waitcnt lgkmcnt({nr})")
    inter(mfmas(acc, 0, zero), reads(cur, 2))
    e(f"s_waitcnt lgkmcnt({nr})")
    inter(mfmas(acc, 1), reads(cur, 3))
    e(f"s_add_u32 s{S_SLOT}, s{S_SLOT}, {STG}\ns_cmp_ge_u32 s{S_SLOT}, {NS*STG}\ns_cselect_b32 s{S_SLOT}, 0, s{S_SLOT}")
    e(f"s_waitcnt lgkmcnt({nr})")
    inter(mfmas(acc, 2), (cur_addr(nxt[0]) + cur_addr(nxt[1])) if nxt else [])
    if pre:
        pre()
    e("s_waitcnt lgkmcnt(0)\ns_barrier")
    inter(mfmas(acc, 3), (reads(nxt, 0) + reads(nxt, 1)) if nxt else [])
    if post:
        post()


def rolled(e, ops, acc, n):
    l = e.lab("Lg")
    if isinstance(n, int):
        e(f"s_mov_b32 s{S_CNT}, {n}")
    else:
        e(n)
    e(f".p2align 5\n{l}:")
    step(e, ops, ops, acc)
    e(f"s_sub_u32 s{S_CNT}, s{S_CNT}, 1\ns_cmp_lg_u32 s{S_CNT}, 0\ns_cbranch_scc1 {l}")


def gemm_start(e, ops):
    for t in cur_addr(ops[0]) + cur_addr(ops[1]):
        e(t)
    e("s_barrier")
    for r in reads(ops, 0) + reads(ops, 1):
        e(r)


def unrolled(e, ops, nxt, acc, n, side, bud=None, zero=False, pre={}, post={}, last=True):
    if side is not None:
        side.bud = bud or BUD
    for k in range(n):
        step(e, ops, ops if (k < n - 1 or not last) else nxt, acc, side, zero and k == 0, pre.get(k), post.get(k))
        if side is not None and not side.q and not getattr(side, 'rep', 0):
            side.rep = 1
            print(f"side done in step {k}", file=sys.stderr)
    if side is not None:
        print(f"side left after {n} steps: {len(side.q)}", file=sys.stderr)


def w0(e, body):
    l = e.lab("Lw")
    return f"s_cmp_lg_u32 s{S_WAVE}, 0\ns_cbranch_scc1 {l}\n{body}\n{l}:"


def pin_sample(sr):
    return f"buffer_load_dword v{VPV}, v{VPO}, s[{sr}:{sr+3}], 0 offen sc1"


def pin_check(e, sr, val, mask=None):
    lp, ok = e.lab("Lcp"), e.lab("Lco")
    t = f"s_mov_b32 s{T2}, {TMO}\n"
    if mask:
        t += mask + "\n"
    t += f"{lp}:\ns_waitcnt vmcnt(0)\nv_cmp_ne_u32 vcc, {val}, v{VPV}\ns_nop 1\n"
    if mask:
        t += f"s_and_b64 vcc, vcc, s[{T0}:{T1}]\n"
    t += f"s_cbranch_vccz {ok}\ns_sleep {SLP}\n{pin_sample(sr)}\n"
    t += f"s_sub_u32 s{T2}, s{T2}, 1\ns_cbranch_scc0 {lp}\n{ok}:"
    return t


def cmul_sq(re, im, t):
    return f"v_mul_f32 v{t}, v{re}, v{im}\nv_mul_f32 v{re}, v{re}, v{re}\nv_fma_f32 v{re}, -v{im}, v{im}, v{re}\nv_add_f32 v{im}, v{t}, v{t}"


def gre(t):
    return ACB + 32 * (t >> 4) + (t & 15)


def gim(t):
    return gre(t) + 16


def poll_unit(e, vflag, voff, soff, mask):
    lp, ok = e.lab("Lcp"), e.lab("Lco")
    t = f"s_mov_b32 s{T2}, {TMO}\ns_waitcnt vmcnt(0)\n"
    if mask:
        t += mask + "\n"
    t += f"{lp}:\nv_cmp_ne_u32 vcc, 1, v{vflag}\ns_nop 1\n"
    if mask:
        t += f"s_and_b64 vcc, vcc, s[{T0}:{T1}]\n"
    t += f"s_cbranch_vccz {ok}\ns_sleep {SLP}\nbuffer_load_dword v{vflag}, v{voff}, s[{SR_FLG}:{SR_FLG+3}], {soff} offen sc1\ns_waitcnt vmcnt(0)\n"
    t += f"s_sub_u32 s{T2}, s{T2}, 1\ns_cbranch_scc0 {lp}\n{ok}:"
    return t


def side_scan(e, with_b1=True):
    S = ["s_nop 7\ns_nop 7"]
    er, ei, nr, ni = 104, 105, 106, 107
    S.append(f"v_mov_b32 v{er}, v{gre(0)}\nv_mov_b32 v{ei}, v{gim(0)}")
    for t in range(1, 32):
        S.append(f"v_fma_f32 v{nr}, v{AR}, v{er}, v{gre(t)}\nv_fma_f32 v{ni}, v{AR}, v{ei}, v{gim(t)}")
        S.append(f"v_fma_f32 v{nr}, -v{AI}, v{ei}, v{nr}\nv_fma_f32 v{ni}, v{AI}, v{er}, v{ni}")
        er, nr = nr, er
        ei, ni = ni, ei
    S.append(f"v_mov_b32 v{LOR}, v{er}\nv_mov_b32 v{LOI}, v{ei}\ns_nop 1\n"
             f"v_permlane32_swap_b32 v{LOR}, v{er}\nv_permlane32_swap_b32 v{LOI}, v{ei}\ns_nop 1")
    S.append(f"v_fma_f32 v110, v{P32R}, v{LOR}, v{er}\nv_fma_f32 v111, v{P32R}, v{LOI}, v{ei}")
    S.append(f"v_fma_f32 v110, -v{P32I}, v{LOI}, v110\nv_fma_f32 v111, v{P32I}, v{LOR}, v111")
    S.append(f"s_add_u32 s{T3}, s{S_G32}, s{S_CH}\ns_lshl_b32 s{T3}, s{T3}, 8\n"
             f"buffer_store_dwordx2 v[110:111], v{VC8}, s[{SR_AGG}:{SR_AGG+3}], s{T3} offen sc1")
    S.append(('skip', 2))
    S.append(f"s_waitcnt vmcnt(0)\nv_mov_b32 v2, 0\nv_mov_b32 v3, 1\ns_mov_b64 exec, 1\n"
             f"buffer_store_dword v3, v2, s[{SR_FLG}:{SR_FLG+3}], s{S_FA} offen sc1\ns_mov_b64 exec, -1")
    S.append(('skip', SKA))
    S.append(f"v_lshrrev_b32 v4, 1, v{VC8}\ns_lshl_b32 s81, s{S_G32}, 2\n"
             f"buffer_load_dword v5, v4, s[{SR_FLG}:{SR_FLG+3}], s81 offen sc1")
    S.append(f"v_lshrrev_b32 v2, 5, v1\nv_lshlrev_b32 v2, 4, v2\ns_sub_u32 s{T3}, s{S_CH}, 1\nv_sub_u32 v2, s{T3}, v2")
    S.append(f"v_lshl_add_u32 v3, v2, 8, v{VC8}\ns_lshl_b32 s82, s{S_G32}, 8")
    S.append(('skip', 2))
    S.append(poll_unit(e, 5, 4, "s81", f"v_lshrrev_b32 v106, 3, v{VC8}\nv_cmp_gt_u32 s[{T0}:{T1}], s{S_CH}, v106"))
    cr, ci, tr, ti = 104, 105, 106, 107
    PR = list(range(108, 128, 2)) + [34, 36, 38, 18, 22, 104]
    S += [f"v_subrev_u32 v4, {256*i}, v3\nbuffer_load_dwordx2 v[{PR[i]}:{PR[i]+1}], v4, s[{SR_AGG}:{SR_AGG+3}], s82 offen" for i in range(15, -1, -1)]
    S.append(('skip', SKB))
    S.append("s_waitcnt vmcnt(0)")
    for i in range(14, -1, -1):
        a = PR[i]
        S.append(f"v_fma_f32 v{tr}, v{P64R}, v{cr}, v{a}\nv_fma_f32 v{ti}, v{P64R}, v{ci}, v{a+1}")
        S.append(f"v_fma_f32 v{tr}, -v{P64I}, v{ci}, v{tr}\nv_fma_f32 v{ti}, v{P64I}, v{cr}, v{ti}")
        cr, tr = tr, cr
        ci, ti = ti, ci
    S.append(f"v_mov_b32 v{tr}, v{cr}\nv_mov_b32 v{ti}, v{ci}\ns_nop 1\n"
             f"v_permlane32_swap_b32 v{tr}, v{cr}\nv_permlane32_swap_b32 v{ti}, v{ci}\ns_nop 1")
    S.append(f"v_fma_f32 v{tr}, v{PKR}, v{cr}, v{tr}\nv_fma_f32 v{ti}, v{PKR}, v{ci}, v{ti}")
    S.append(f"v_fma_f32 v{tr}, -v{PKI}, v{ci}, v{tr}\nv_fma_f32 v{ti}, v{PKI}, v{cr}, v{ti}")
    cr, tr = tr, cr
    ci, ti = ti, ci
    S.append(f"v_fma_f32 v{tr}, v{P32R}, v{cr}, v{LOR}\nv_fma_f32 v{ti}, v{P32R}, v{ci}, v{LOI}")
    S.append(f"v_fma_f32 v{tr}, -v{P32I}, v{ci}, v{tr}\nv_fma_f32 v{ti}, v{P32I}, v{cr}, v{ti}")
    S.append(f"v_cmp_lt_u32 vcc, 31, v1\ns_nop 1\nv_cndmask_b32 v{cr}, v{cr}, v{tr}, vcc\nv_cndmask_b32 v{ci}, v{ci}, v{ti}, vcc")
    gr, gi, nr, ni = cr, ci, tr, ti
    if with_b1:
        BQ = 112
        S.append(f"v_lshrrev_b32 v2, 5, v1\nv_lshlrev_b32 v2, 4, v2\ns_lshl_b32 s{T3}, s{S_FT}, 1\ns_add_u32 s{T3}, s{T3}, s{S_WM}\ns_lshl_b32 s{T3}, s{T3}, 7")
        S.append("\n".join(f"buffer_load_dwordx4 v[{BQ+4*i}:{BQ+3+4*i}], v2, s[{SR_B1}:{SR_B1+3}], s{T3} offen offset:{32*i}" for i in range(4)))
    S.append(f"v_lshrrev_b32 v2, 5, v1\nv_lshlrev_b32 v2, 12, v2\nv_lshl_add_u32 v2, v{VC8}, 1, v2")
    S.append(f"s_lshl_b32 s81, s{S_PT}, 5\ns_add_u32 s81, s81, s{S_CH}\ns_lshl_b32 s81, s81, 4\ns_add_u32 s81, s81, s{S_WN}\ns_lshl_b32 s81, s81, 9\ns_add_u32 s82, s81, 0x400000")
    for t in range(32):
        S.append(f"v_fma_f32 v{nr}, v{AR}, v{gr}, v{gre(t)}\nv_fma_f32 v{ni}, v{AR}, v{gi}, v{gim(t)}")
        S.append(f"v_fma_f32 v{nr}, -v{AI}, v{gi}, v{nr}\nv_fma_f32 v{ni}, v{AI}, v{gr}, v{ni}")
        gr, nr = nr, gr
        gi, ni = ni, gi
        S.append(f"v_mul_f32 v{gre(t)}, v{CR}, v{gr}\nv_mul_f32 v{gim(t)}, v{CR}, v{gi}")
        S.append(f"v_fma_f32 v{gre(t)}, -v{CI}, v{gi}, v{gre(t)}\nv_fma_f32 v{gim(t)}, -v{CI}, v{gr}, -v{gim(t)}")
        if t % 8 == 7:
            b = t - 7
            for g, so in ((gre, "s81"), (gim, "s82")):
                S.append("\n".join(f"v_cvt_pk_bf16_f32 v{g(b)+i}, v{g(b+2*i)}, v{g(b+2*i+1)}" for i in range(4)))
                S.append(f"buffer_store_dwordx4 v[{g(b)}:{g(b)+3}], v2, s[{SR_HP}:{SR_HP+3}], {so} offen offset:{128*b} sc1")
    S.append(('skip', 2))
    S.append(f"s_waitcnt vmcnt(0)\nv_mov_b32 v2, 0\nv_mov_b32 v3, 1\ns_mov_b64 exec, 1\n"
             f"buffer_store_dword v3, v2, s[{SR_FLG}:{SR_FLG+3}], s{S_FHo} offen sc1\ns_mov_b64 exec, -1")
    return S


def side_gelu(e):
    S = []
    C0 = -2.0 * math.sqrt(2.0 / math.pi) * math.log2(math.e)
    BQ = 112
    S.append(f"s_mov_b32 s82, 0x{f2u(C0*0.044715):x}\ns_mov_b32 s83, s82\nv_mov_b32 v8, 0x{f2u(C0):x}\nv_mov_b32 v9, v8")
    S.append("v_mov_b32 v10, 1.0\nv_mov_b32 v11, 1.0\nv_mov_b32 v12, 0xffff0000")
    S.append("v_and_b32 v2, 31, v1\nv_lshrrev_b32 v3, 5, v1\nv_lshlrev_b32 v3, 10, v3\nv_add_u32 v2, v2, v3\nv_lshlrev_b32 v2, 4, v2")
    S.append(f"s_lshl_b32 s{T3}, s{S_FT}, 1\ns_add_u32 s{T3}, s{T3}, s{S_WM}\ns_lshl_b32 s{T3}, s{T3}, 13\ns_lshl_b32 s{T2}, s{S_DT1}, 1\ns_add_u32 s{T2}, s{T2}, s{S_WN}\n"
             f"s_lshl_b32 s{T2}, s{T2}, 6\ns_add_u32 s{T3}, s{T3}, s{T2}\ns_lshl_b32 s81, s{T3}, 4")
    UB = 104
    for j in range(2):
        for s in range(2):
            bq = BQ + 4 * (2 * j + s)
            for i in range(4):
                S.append(f"v_lshlrev_b32 v{UB+2*i}, 16, v{bq+i}\nv_and_b32 v{UB+1+2*i}, v12, v{bq+i}")
            for jn in range(2):
                a = ACM + 32 * j + 16 * jn + 8 * s
                for i in range(4):
                    x0, x1 = a + 2 * i, a + 2 * i + 1
                    t0, t1 = (36, 37) if i & 1 else (34, 35)
                    if "nor1" not in OPT:
                        S.append(f"v_cvt_pk_bf16_f32 v{t0}, v{x0}, v{x1}\nv_lshlrev_b32 v{x0}, 16, v{t0}\nv_and_b32 v{x1}, v12, v{t0}")
                    S.append(f"v_add_f32 v{x0}, v{x0}, v{UB+2*i}\nv_add_f32 v{x1}, v{x1}, v{UB+2*i+1}")
                    S.append(f"v_cvt_pk_bf16_f32 v{t0}, v{x0}, v{x1}\nv_lshlrev_b32 v{x0}, 16, v{t0}\nv_and_b32 v{x1}, v12, v{t0}")
                    S.append(f"v_mul_f32 v{t0}, v{x0}, v{x0}\nv_mul_f32 v{t1}, v{x1}, v{x1}")
                    S.append(f"v_fma_f32 v{t0}, v{t0}, s82, v8\nv_fma_f32 v{t1}, v{t1}, s82, v8")
                    S.append(f"v_mul_f32 v{t0}, v{t0}, v{x0}\nv_mul_f32 v{t1}, v{t1}, v{x1}")
                    S.append(f"v_exp_f32 v{t0}, v{t0}")
                    S.append(f"v_exp_f32 v{t1}, v{t1}")
                    S.append(f"v_add_f32 v{t0}, 1.0, v{t0}\nv_add_f32 v{t1}, 1.0, v{t1}")
                    S.append(f"v_rcp_f32 v{t0}, v{t0}")
                    S.append(f"v_rcp_f32 v{t1}, v{t1}")
                    S.append(f"v_mul_f32 v{x0}, v{x0}, v{t0}\nv_mul_f32 v{x1}, v{x1}, v{t1}\nv_cvt_pk_bf16_f32 v{a+i}, v{x0}, v{x1}")
                S.append(f"s_add_u32 s{T3}, s81, 0x{((4*j+2*s)*1024+32*jn)*16:x}\n"
                         f"buffer_store_dwordx4 v[{a}:{a+3}], v2, s[{SR_U}:{SR_U+3}], s{T3} offen sc1")
    S.append(('skip', 2))
    S.append(f"s_waitcnt vmcnt(0)\nv_mov_b32 v2, 0\nv_mov_b32 v3, 1\ns_mov_b64 exec, 1\n"
             f"buffer_store_dword v3, v2, s[{SR_FLG}:{SR_FLG+3}], s{S_FUo} offen sc1\ns_mov_b64 exec, -1")
    return S


def row_voff(sh, so=81):
    return [f"v_lshrrev_b32 v3, 4, v1\nv_lshlrev_b32 v3, 10, v3\nv_and_b32 v4, 15, v1\nv_lshl_add_u32 v3, v4, 2, v3\nv_lshlrev_b32 v3, {sh}, v3",
            f"s_lshl_b32 s{so}, s{S_ST}, 1\ns_add_u32 s{so}, s{so}, s{S_WN}\ns_lshl_b32 s{so}, s{so}, 10\ns_lshl_b32 s{T3}, s{S_DT2}, 1\ns_add_u32 s{so}, s{so}, s{T3}\n"
            f"s_add_u32 s{so}, s{so}, s{S_WM}\ns_lshl_b32 s{so}, s{so}, {6+sh}"]


def acc_to_lds(e):
    e(f"s_mul_i32 s{T0}, s{S_WAVE}, {64*272}\nv_and_b32 v4, 31, v1\nv_mul_u32_u24 v4, 272, v4\nv_lshrrev_b32 v5, 5, v1\nv_lshl_add_u32 v4, v5, 7, v4\nv_add_u32 v4, s{T0}, v4")
    e("s_nop 7\ns_nop 3")
    for j in range(2):
        for jn in range(2):
            for q in range(4):
                a = ACB + 32 * j + 16 * jn + 4 * q
                e(f"ds_write_b128 v4, v[{a}:{a+3}] offset:{jn*32*272+j*64+q*16}")
    e("s_waitcnt lgkmcnt(0)\ns_barrier")


def compute(e):
    e(f"s_lshr_b32 s{S_WM}, s{S_WAVE}, 1\ns_and_b32 s{S_WN}, s{S_WAVE}, 1")
    ln_rows(e)
    e(f"s_mov_b32 s{S_SLOT}, 0")
    srd(e, SR_AGG, 'ws', WS_AGG, 262144)
    srd(e, SR_FLG, 'ws', WS_FLG, 16384)
    srd(e, SR_HP, 'ws', WS_HP, 8 * MB)
    srd(e, SR_U, 'ws', WS_ST, 65536)
    srd(e, SR_B1, 'b1', 0, 3584 * 2)
    CA, CB = 16, 20
    bu = (Opnd('KC', 0, 24, CA, 'scan'), Opnd('KC', 16384, 25, CB, 'nat'))
    m1 = (Opnd('KS', 0, 26, CA, 'u8'), Opnd('KB', 16384, 27, CB, 'nat'))
    ch = (bu[0], Opnd('KT', 16384, 28, CB, 'nat'))
    uw = (Opnd('KB', 0, 29, CA, 'nat'), Opnd('KS', 16384, 25, CB, 'nat'))
    for op, w in ((bu[0], S_WM), (bu[1], S_WN)):
        cw_base(e, op, w)
    ts(e)
    gemm_start(e, bu)
    e2 = E()
    for op, w in ((m1[0], S_WM), (m1[1], S_WN), (ch[1], S_WN), (uw[0], S_WM)):
        cw_base(e2, op, w)
    e2(f"v_mov_b32 v{P32R}, v{AR}\nv_mov_b32 v{P32I}, v{AI}")
    for _ in range(5):
        e2(cmul_sq(P32R, P32I, 2))
    e2(f"v_mov_b32 v{P64R}, v{P32R}\nv_mov_b32 v{P64I}, v{P32I}")
    e2(cmul_sq(P64R, P64I, 2))
    e2(f"v_mov_b32 v{PKR}, v{P64R}\nv_mov_b32 v{PKI}, v{P64I}")
    for _ in range(4):
        e2(cmul_sq(PKR, PKI, 2))
    e2(f"v_lshlrev_b32 v{VPO}, 2, v1\nv_mov_b32 v36, 1\nv_mov_b32 v37, s2")
    e2(f"v_lshrrev_b32 v34, 5, v1\nv_lshlrev_b32 v34, 10, v34\ns_lshl_b32 s81, s{S_CH}, 11\ns_mov_b32 s82, 32768")
    e2(f"v_lshrrev_b32 v35, 3, v{VP}\nv_lshlrev_b32 v35, 8, v35\nv_and_b32 v2, 7, v{VP}\nv_lshl_add_u32 v35, v2, 2, v35")
    sd = Side(e2.L)
    CK = 16 - NS

    def stat_loads():
        for i in range(8):
            o = (i >> 1) * 256 + (i & 1) * 16
            e(f"buffer_load_dwordx4 v[{ACM+4*i}:{ACM+4*i+3}], v34, s[{SR_U}:{SR_U+3}], s81 offen offset:{o}")
            e(f"buffer_load_dwordx4 v[{ACM+32+4*i}:{ACM+32+4*i+3}], v34, s[{SR_U}:{SR_U+3}], s81 offen offset:{o+32}")
        e(f"buffer_load_dword v104, v35, s[{SR_U}:{SR_U+3}], 0 offen offset:64\nbuffer_load_dword v105, v35, s[{SR_U}:{SR_U+3}], s82 offen offset:64")

    def arrive():
        assert not sd.q
        e(w0(e, f"s_mov_b64 exec, 1\nbuffer_store_byte v36, v37, s[{SR_DBG}:{SR_DBG+3}], 0 offen sc1\ns_mov_b64 exec, -1"))

    pre = {ARR: lambda: e(f"s_waitcnt vmcnt({NPF})"), CK: lambda: e(w0(e, pin_check(e, SR_DBG, "0x01010101")))}
    post = {ARR: arrive, CK - 3: lambda: e(w0(e, pin_sample(SR_DBG))), CK: stat_loads}
    unrolled(e, bu, None, ACB, 15, sd, zero=True, pre=pre, post=post, last=False)

    def apply_stats():
        cw_base(e, uw[1], S_WN)
        e("s_waitcnt vmcnt(0)\ns_nop 7")
        for t in range(0, 32, 2):
            e(f"v_pk_fma_f32 v[{gre(t)}:{gre(t)+1}], v[{ACM+t}:{ACM+t+1}], v[104:105], v[{gre(t)}:{gre(t)+1}] op_sel:[0,0,0] op_sel_hi:[1,0,1] neg_lo:[1,0,0] neg_hi:[1,0,0]")
            e(f"v_pk_fma_f32 v[{gim(t)}:{gim(t)+1}], v[{ACM+t}:{ACM+t+1}], v[104:105], v[{gim(t)}:{gim(t)+1}] op_sel:[0,1,0] op_sel_hi:[1,1,1] neg_lo:[1,0,0] neg_hi:[1,0,0]")
        for t in range(0, 32, 2):
            for g in (gre, gim):
                e(f"v_pk_mul_f32 v[{g(t)}:{g(t)+1}], v[{g(t)}:{g(t)+1}], v[{ACM+32+t}:{ACM+33+t}]")
        srd(e, SR_U, 'ws', WS_U, 1024 * 3584 * 2)

    hoff = f"s_lshl_b32 s{T0}, s{S_ST}, 8\ns_add_u32 s{T0}, s{T0}, {F_H}\nv_lshlrev_b32 v{VPO}, 2, v1\nv_add_u32 v{VPO}, s{T0}, v{VPO}\n"
    uoff = (f"s_lshl_b32 s{T0}, s{S_DT2}, 9\ns_mul_i32 s{T1}, s{S_KH}, {16*(KO//2)}\ns_add_u32 s{T0}, s{T0}, s{T1}\ns_add_u32 s{T0}, s{T0}, {F_U}\n"
            f"v_lshlrev_b32 v{VPO}, 2, v1\nv_add_u32 v{VPO}, s{T0}, v{VPO}\n")
    assert 4 * ((KO + 1) // 2) <= 64 and 112 - 4 * (KO // 2) <= 64
    umask = f"s_cmp_eq_u32 s{S_KH}, 0\ns_cselect_b32 s{T0}, {4*((KO+1)//2)}, {112-4*(KO//2)}\nv_cmp_gt_u32 s[{T0}:{T1}], s{T0}, v1"

    spare, join = e.lab("Lcs"), e.lab("Lcj")
    e(f"s_cmp_ge_u32 s{S_IDX}, 28\ns_cbranch_scc1 {spare}")
    step(e, bu, m1, ACB)
    apply_stats()
    ts(e)
    sd = Side(side_scan(e))
    if "sf" in OPT:
        sd.flush(e)
        ts(e)

    def h_sample():
        assert not sd.q, f"scan not finished: {len(sd.q)}"
        e(w0(e, hoff + pin_sample(SR_FLG)))

    unrolled(e, m1, ch, ACM, 32, sd, zero=True, pre={CK + 16: lambda: e(w0(e, pin_check(e, SR_FLG, "1")))}, post={CK + 16 - 3: h_sample})
    ts(e)
    sg = Side(side_gelu(e))
    if "sf" in OPT:
        e("s_nop 7\ns_nop 7")
        sg.flush(e)
        ts(e)

    def u_check():
        print(f"gelu flushed units: {len(sg.q)}", file=sys.stderr)
        sg.flush(e)
        e(w0(e, uoff + pin_sample(SR_FLG) + "\n" + pin_check(e, SR_FLG, "1", umask)))

    unrolled(e, ch, uw, ACB, 16, sg, bud=BUDG, zero=True, pre={CK: u_check})
    e(f"s_branch {join}")
    e(f"{spare}:")
    step(e, bu, None, ACB)
    apply_stats()
    Side(side_scan(e, False)).flush(e)
    e(w0(e, hoff + pin_sample(SR_FLG) + "\n" + pin_check(e, SR_FLG, "1").replace(f"s_sleep {SLP}", "s_sleep 16")))
    e("s_barrier")
    gemm_start(e, ch)
    sg = Side([])
    unrolled(e, ch, uw, ACB, 16, None, zero=True,
             pre={CK: lambda: e(w0(e, uoff + pin_sample(SR_FLG) + "\n" + pin_check(e, SR_FLG, "1", umask)))})
    e(f"{join}:")
    ts(e)
    rolled(e, uw, ACB, f"s_cmp_eq_u32 s{S_KH}, 0\ns_cselect_b32 s{S_CNT}, {KO-1}, {55-KO}")
    step(e, uw, None, ACB)
    ts(e)
    acc_to_lds(e)
    ts(e)
    ts_store(e)


def gen(e):
    name = NAME + "_kernel"
    e(f".globl {name}\n.p2align 8\n.type {name},@function\n{name}:")
    e("s_cmp_ge_u32 s2, 256\ns_cbranch_scc1 L_end")
    e("s_load_dwordx16 s[4:19], s[0:1], 0\ns_load_dwordx16 s[20:35], s[0:1], 64\ns_load_dwordx2 s[36:37], s[0:1], 128")
    rts(e, 0)
    ts(e)
    e(f"v_lshrrev_b32 v2, 6, v0\nv_and_b32 v1, 63, v0\nv_readfirstlane_b32 s{S_WAVE}, v2")
    X, I = S_XCD, S_IDX
    e(f"s_and_b32 s{X}, s2, 7\ns_lshr_b32 s{I}, s2, 3")
    e(f"s_and_b32 s{S_LT}, s{X}, 3\ns_lshl_b32 s{S_LT}, s{S_LT}, 2\ns_and_b32 s{T0}, s{I}, 3\ns_add_u32 s{S_LT}, s{S_LT}, s{T0}")
    e(f"s_lshr_b32 s{S_PT}, s{X}, 2\ns_lshl_b32 s{S_PT}, s{S_PT}, 3\ns_lshr_b32 s{T0}, s{I}, 2\ns_add_u32 s{S_PT}, s{S_PT}, s{T0}")
    e(f"s_and_b32 s{S_DT1}, s{X}, 1\ns_lshl_b32 s{S_DT1}, s{S_DT1}, 2\ns_and_b32 s{T0}, s{I}, 3\ns_add_u32 s{S_DT1}, s{S_DT1}, s{T0}")
    e(f"s_lshr_b32 s{S_FT}, s{X}, 1\ns_mul_i32 s{S_FT}, s{S_FT}, 7\ns_lshr_b32 s{T0}, s{I}, 2\ns_add_u32 s{S_FT}, s{S_FT}, s{T0}")
    e(f"s_and_b32 s{S_KH}, s{X}, 1")
    e(f"s_bfe_u32 s{S_ST}, s{X}, 0x10001\ns_lshl_b32 s{S_ST}, s{S_ST}, 3\ns_and_b32 s{T0}, s{I}, 7\ns_add_u32 s{S_ST}, s{S_ST}, s{T0}")
    e(f"s_lshr_b32 s{S_DT2}, s{X}, 2\ns_lshl_b32 s{S_DT2}, s{S_DT2}, 2\ns_lshr_b32 s{T0}, s{I}, 3\ns_add_u32 s{S_DT2}, s{S_DT2}, s{T0}")
    e("s_waitcnt lgkmcnt(0)")
    e(f"s_cmp_lt_u32 s{S_WAVE}, 4\ns_cbranch_scc1 L_compute")
    loader(e)
    e("L_compute:")
    compute(e)
    e("L_end:\ns_endpgm")
    e(f""".section .rodata,"a"
.p2align 6
.amdhsa_kernel {name}
  .amdhsa_next_free_vgpr 256
  .amdhsa_next_free_sgpr 102
  .amdhsa_accum_offset 256
  .amdhsa_group_segment_fixed_size 0
  .amdhsa_kernarg_size 136
  .amdhsa_user_sgpr_count 2
  .amdhsa_user_sgpr_kernarg_segment_ptr 1
  .amdhsa_system_sgpr_workgroup_id_x 1
  .amdhsa_float_denorm_mode_32 3
.end_amdhsa_kernel""")


def main(path):
    ref = open(f"cdna_kernels/{NAME}.s.ref").read().splitlines()
    hdr = [l for l in ref if l.startswith(";") and "@launch" not in l and "Override" not in l and "grid=ceil" not in l][:18]
    e = E()
    gen(e)
    out = "\n".join(hdr) + "\n"
    if "list" in OPT:
        out += f"; @launch kernel={NAME}_kernel grid=(256,1,1) block=(512,1,1) lds={NS*STG+16384+256}\n"
    else:
        out += f"; @launch grid=(256,1,1) block=(512,1,1) lds={NS*STG+16384+256}\n"
    out += '.amdgcn_target "amdgcn-amd-amdhsa--gfx950"\n.text\n'
    out += "\n".join(l for l in e.L if l) + "\n"
    open(path, "w").write(out)


if __name__ == "__main__":
    main(sys.argv[1] if len(sys.argv) > 1 else f"cdna_kernels/{NAME}.s")
```

```python
import sys, struct, math, os

NAME = "parallel_sum__ssm_conv_s5__mixer_token_mlp__prompt"
MB = 1 << 20
WS_HH, WS_U, WS_HP = 4 * MB, 8 * MB, 16 * MB
WS_ST = 24 * MB
WS_AGG = 24 * MB + 131072
WS_FLG = 25 * MB
F_H, F_U, F_X = 4096, 8192, 12288
WS_XCH = 32 * MB
WS_TS = 48 * MB


def env(n, d):
    return type(d)(os.environ.get(n, d))


NS = 4
STG = 32768
KO = env("KO", 32)
RCT = env("RCT", 6)
BUD = env("BUD", 32)
BUDG = env("BUDG", 40)
OPT = set(os.environ.get("OPT", "").split(","))
SLP = env("SLP", 8)
TMO = 0x8000
ARR = env("ARR", 8)
GA = env("GA", 4)
SKS = env("SKS", 6)
PF0, PFD, PFW = env("PF0", 3), env("PFD", 16), env("PFW", 24)
ALD = env("ALD", 2)
DSM = env("DSM", 2)
PFS = [PF0 + i * PFD // 10 for i in range(14)] if "cpf" in OPT else []
SG, NP1, NP2 = env("SG", 128), env("NP1", 4), env("NP2", 4)
SP0, SP1, SW1, SW2 = env("SP0", 3), env("SP1", 16), env("SW1", 9), env("SW2", 9)
PFM, OUTM = env("PFM", ""), env("OUTM", "")
BL0 = env("BL0", 17)
TSL = env("TSL", "")

LNL = NS * STG
LROW = 2176
L_STAT = LNL + 8 * LROW
L_CON = L_STAT + 256
L_AGL = L_CON + 2048
L_CAR = L_AGL + 1024
LDS_SIZE = L_CAR + 1024

P = dict(x=4, lre=6, lim=8, bre=10, bim=12, cre=14, cim=16, ldt=18, dsk=20, w1=24, b1=26, w2=28, b2=30,
         out=32, dbg=34, ws=36)
S_W = 3
S_WAVE, S_XCD, S_IDX = 38, 39, 40
S_LT, S_PT, S_DT1, S_FT, S_KH, S_ST, S_DT2 = 41, 42, 43, 44, 45, 46, 47
T0, T1, T2, T3 = 48, 49, 50, 51
S_CNT, S_SLOT, S_A, S_B = 52, 53, 54, 55
S_WM, S_WN = 22, 23
ACB, ACM = 128, 192
DPP = "row_mask:0xf bank_mask:0xf"


def f2u(x):
    return struct.unpack('<I', struct.pack('<f', x))[0]


class E:
    n = 0

    def __init__(s):
        s.L = []

    def __call__(s, t):
        s.L.append(t)

    def lab(s, p="L"):
        E.n += 1
        return f"{p}_{E.n}"


def srd_s(sd, ptr, off, size):
    lo = P[ptr]
    if off:
        t = f"s_add_u32 s{sd}, s{lo}, 0x{off:x}\ns_addc_u32 s{sd+1}, s{lo+1}, 0\n"
    else:
        t = f"s_mov_b32 s{sd}, s{lo}\ns_mov_b32 s{sd+1}, s{lo+1}\n"
    return t + f"s_mov_b32 s{sd+2}, 0x{size:x}\ns_mov_b32 s{sd+3}, 0x20000"


def srd(e, sd, ptr, off, size):
    e(srd_s(sd, ptr, off, size))


VTS = 5
TSN = {}


def ts(e, n, lab=""):
    if "ts" in OPT and lab == (TSL if lab else "") and not (TSL and not lab and 2 <= n < 10):
        e(f"{'s_memrealtime' if 'tr' in OPT or n >= 14 else 's_memtime'} s[100:101]\ns_waitcnt lgkmcnt(0)\nv_writelane_b32 v{VTS}, s100, {n}")


def ts_store(e):
    if "ts" in OPT:
        e("s_waitcnt vmcnt(0)")
        ts(e, 15)
        srd(e, 60, 'ws', WS_TS, MB)
        e(f"s_lshl_b32 s{T0}, s2, 3\ns_add_u32 s{T0}, s{T0}, s{S_WAVE}\ns_lshl_b32 s{T0}, s{T0}, 6\nv_lshlrev_b32 v2, 2, v1\ns_mov_b64 exec, 0xffff\n"
          f"buffer_store_dword v{VTS}, v2, s[60:63], s{T0} offen")


def rb1(d, v):
    return f"v_cvt_pk_bf16_f32 v{d}, 0, v{v}"


def zipemit(e, streams):
    ls = [("\n".join(s)).split("\n") for s in streams]
    n = max(len(x) for x in ls)
    for i in range(n):
        for x in ls:
            if i < len(x):
                e(x[i])


LX, LBQ, LS_, LF = 64, 72, 80, 96


def ln_row(e):
    S, Q, BS, B2, Ta, Tb, Tc, M1, R1, NM = range(LS_, LS_ + 10)
    ONE, LO, HI = T1, T2, T3
    e(f"s_mov_b32 s{ONE}, 0x3f803f80\ns_mov_b32 s{LO}, 0x3f80\ns_mov_b32 s{HI}, 0x3f800000")

    def allreduce(v, t):
        return [f"v_add_f32 v{v}, v{v}, v{v} quad_perm:[1,0,3,2] {DPP}",
                f"v_add_f32 v{v}, v{v}, v{v} quad_perm:[2,3,0,1] {DPP}",
                f"v_add_f32 v{v}, v{v}, v{v} row_half_mirror {DPP}",
                f"v_add_f32 v{v}, v{v}, v{v} row_mirror {DPP}",
                f"v_mov_b32 v{t}, v{v}", f"v_permlane16_swap_b32 v{t}, v{v}", f"v_add_f32 v{v}, v{v}, v{t}",
                f"v_mov_b32 v{t}, v{v}", f"v_permlane32_swap_b32 v{t}, v{v}", f"v_add_f32 v{v}, v{v}, v{t}"]

    for ps in range(2):
        e(f"v_dot2_f32_bf16 v{S}, v{LX}, s{ONE}, 0\nv_dot2_f32_bf16 v{Q}, v{LX}, v{LX}, 0")
        if ps == 0:
            e(f"v_dot2_f32_bf16 v{BS}, v{LBQ}, s{ONE}, 0")
        for i in range(1, 8):
            e(f"v_dot2_f32_bf16 v{S}, v{LX+i}, s{ONE}, v{S}\nv_dot2_f32_bf16 v{Q}, v{LX+i}, v{LX+i}, v{Q}")
            if ps == 0:
                e(f"v_dot2_f32_bf16 v{BS}, v{LBQ+i}, s{ONE}, v{BS}")
        e("s_nop 3")
        zipemit(e, [allreduce(S, Ta), allreduce(Q, Tb), allreduce(BS, Tc) if ps == 0 else ["s_nop 0"] * 10])
        e(f"v_mul_f32 v{S}, 0x{f2u(1/1024):x}, v{S}\nv_mul_f32 v{Q}, 0x{f2u(1/1024):x}, v{Q}\nv_fma_f32 v{Q}, -v{S}, v{S}, v{Q}\nv_max_f32 v{Q}, 0, v{Q}")
        e(rb1(Q, Q) + f"\nv_add_f32 v{Q}, 0x{f2u(1e-5):x}, v{Q}\n" + rb1(Q, Q) + f"\nv_sqrt_f32 v{Q}, v{Q}\n" + rb1(S, S))
        e(f"v_xor_b32 v{NM}, 0x80000000, v{S}\n" + rb1(Q, Q) + f"\nv_rcp_f32 v{Q}, v{Q}")
        for i in range(8):
            e(f"v_dot2_f32_bf16 v{LF+2*i}, v{LX+i}, s{LO}, v{NM}\nv_dot2_f32_bf16 v{LF+2*i+1}, v{LX+i}, s{HI}, v{NM}")
        if ps == 0:
            e(f"v_mov_b32 v{M1}, v{S}\nv_mov_b32 v{R1}, v{Q}")
        e("s_nop 1")
        for i in range(16):
            e(rb1(LF + i, LF + i))
        for i in range(8):
            e(f"v_pk_mul_f32 v[{LF+2*i}:{LF+2*i+1}], v[{LF+2*i}:{LF+2*i+1}], v[{S}:{Q}] op_sel:[0,1] op_sel_hi:[1,1]")
        for i in range(8):
            e(f"v_cvt_pk_bf16_f32 v{LX+i}, v{LF+2*i}, v{LF+2*i+1}")


def ln_tail(e):
    S, Q, BS, B2, Ta, Tb, Tc, M1, R1, NM = range(LS_, LS_ + 10)
    e(f"s_mul_i32 s{T1}, s{S_WAVE}, {LROW}\ns_add_u32 s{T1}, s{T1}, 0x{LNL:x}\nv_add_u32 v3, s{T1}, v2")
    e(f"ds_write_b128 v3, v[{LX}:{LX+3}]\nds_write_b128 v3, v[{LX+4}:{LX+7}] offset:1024")
    e(f"v_lshrrev_b32 v{Ta}, 16, v{M1}\nv_lshl_or_b32 v{Ta}, v{B2}, 16, v{Ta}")
    for i, v in ((1, R1), (2, BS), (3, Ta), (4, R1)):
        e(f"v_cmp_eq_u32 vcc, {i}, v1\nv_cndmask_b32 v{M1}, v{M1}, v{v}, vcc")
    e(f"s_lshl_b32 s{T1}, s{S_WAVE}, 2\ns_add_u32 s{T1}, s{T1}, 0x{L_STAT:x}\nv_lshl_add_u32 v3, v1, 5, s{T1}")
    e(f"s_lshl_b32 s{T2}, s{S_WAVE}, 3\ns_add_u32 s{T2}, s{T2}, 0x{L_STAT+128-12:x}\nv_lshl_add_u32 v4, v1, 2, s{T2}")
    e(f"v_cmp_lt_u32 vcc, 2, v1\nv_cndmask_b32 v3, v3, v4, vcc\ns_mov_b64 exec, 31\nds_write_b32 v3, v{M1}\ns_mov_b64 exec, -1")


S_M0B, S_M1, S_MSK = 0, 1, 26
S_RO = 27
SL_FLG, SL_DBG, SL_AGG = 88, 92, 96
P64R, P64I, P128R, P128I, PKR, PKI = 44, 45, 46, 47, 48, 49
VA0, LVC8, VSM, VSO, VXS, VXO = 50, 52, 53, 54, 55, 56
LB, LR, LWG, LPT, LDS_, LXX = 64, 128, 192, 208, 240, 244


def ld_voff_kc(e, vd, s_row0, ld, bcat=False, scan=False, t0=57, t1=3, t2=4):
    e(f"v_lshrrev_b32 v{t0}, 3, v1\nv_and_b32 v{t1}, 7, v1\nv_lshrrev_b32 v{t2}, 4, v1\nv_xor_b32 v{t1}, v{t1}, v{t2}")
    if bcat:
        e(f"s_lshr_b32 s{T0}, s{S_W}, 1\ns_lshl_b32 s{T0}, s{T0}, 5\ns_add_u32 s{T0}, s{T0}, s{s_row0}")
    else:
        e(f"s_lshl_b32 s{T0}, s{S_W}, 5\ns_add_u32 s{T0}, s{T0}, s{s_row0}")
    e(f"v_add_u32 v{t0}, s{T0}, v{t0}")
    if scan:
        e(f"s_and_b32 s{T0}, s{S_W}, 1\ns_lshl_b32 s{T0}, s{T0}, 2\nv_xor_b32 v{t1}, s{T0}, v{t1}")
    assert ld == 2048
    e(f"v_lshlrev_b32 v{t0}, 11, v{t0}\nv_lshl_add_u32 v{vd}, v{t1}, 4, v{t0}")
    if not scan:
        e(f"v_xor_b32 v{t1}, 4, v{t1}")
    e(f"v_lshl_add_u32 v{t0}, v{t1}, 4, v{t0}")
    for q in range(1, 4):
        e(f"v_add_u32 v{vd+q}, 0x{q*(8*2048-1024):x}, v{t0 if q & 1 else vd}")


def ld_voff_kb(e, vd, s_row0, R, t0=57):
    e(f"v_add_u32 v{t0}, s{s_row0}, v1\nv_lshlrev_b32 v{t0}, 4, v{t0}\ns_mul_i32 s{T0}, s{S_W}, {2*R*16}\nv_add_u32 v{t0}, s{T0}, v{t0}")
    for q in range(4):
        e(f"v_add_u32 v{vd+q}, 0x{(q>>1)*R*16 + (q&1)*1024 + 4096 - q*1024:x}, v{t0}")


def ld_voff_kt(e, vd, s_tile, t0=57):
    e(f"s_lshl_b32 s{T0}, s{s_tile}, 14\ns_lshl_b32 s{T1}, s{S_W}, 12\ns_add_u32 s{T0}, s{T0}, s{T1}")
    for q in range(4):
        e(f"v_xor_b32 v{t0}, {q<<2}, v1\nv_lshlrev_b32 v{t0}, 4, v{t0}\nv_add_u32 v{vd+q}, s{T0}, v{t0}")


def ld_voff_ks(e, vd, s_n0, ld, t0=57, t1=3, t2=4):
    e(f"v_lshrrev_b32 v{t0}, 4, v1\nv_and_b32 v{t1}, 15, v1\nv_lshlrev_b32 v{t2}, 2, v{t0}\nv_xor_b32 v{t1}, v{t1}, v{t2}")
    e(f"s_lshl_b32 s{T0}, s{S_W}, 4\nv_add_u32 v{t0}, s{T0}, v{t0}")
    e(f"s_lshl_b32 s{T1}, s{s_n0}, 1\nv_lshlrev_b32 v{t1}, 4, v{t1}\nv_add_u32 v{t1}, s{T1}, v{t1}")
    e(f"v_mul_u32_u24 v{t0}, {ld}, v{t0}\nv_add_u32 v{vd}, v{t0}, v{t1}")
    for q in range(1, 4):
        e(f"v_add_u32 v{vd+q}, 0x{q*(4*ld-1024):x}, v{vd}")


class Seg:
    def __init__(s, va, sa, dA, dB, init):
        s.va, s.sa, s.dA, s.dB, s.init = va, sa, dA, dB, init


class Ld:
    def __init__(s, e):
        s.e = e
        s.ops = 0
        s.end = {}
        s.lg = True

    def issue(s, st, sg, j, fill=()):
        e = s.e
        fill = [l for f in fill for l in f.split("\n")]
        per = (len(fill) + 7) // 8

        def fl(i):
            for l in fill[i * per:(i + 1) * per]:
                e(l)
                if l.startswith("buffer_"):
                    s.ops += 1
                if l.startswith("ds_write"):
                    s.lg = True
        if j == 0:
            e(sg.init)
        e(f"s_mov_b32 m0, s{S_SLOT}\ns_add_u32 s{S_M1}, s{S_SLOT}, 16384")
        for h in range(2):
            if h:
                e(f"s_mov_b32 m0, s{S_M1}\ns_nop 0")
            for q in range(4):
                e(f"buffer_load_dwordx4 v{sg.va+4*h+q}, s[{sg.sa+4*h}:{sg.sa+4*h+3}], s{S_B if h else S_A} offen offset:{q*1024} lds")
                s.ops += 1
                s.end[st] = s.ops
                fl(4 * h + q)
        e(f"s_add_u32 s{S_A}, s{S_A}, 0x{sg.dA:x}\ns_add_u32 s{S_B}, s{S_B}, 0x{sg.dB:x}")
        e(f"s_add_u32 s{S_SLOT}, s{S_SLOT}, {STG}\ns_cmp_ge_u32 s{S_SLOT}, {NS*STG}\ns_cselect_b32 s{S_SLOT}, s{S_M0B}, s{S_SLOT}")

    def extra(s, code):
        s.e(code)
        s.ops += sum(1 for l in code.split("\n") if l.startswith("buffer_"))
        s.lg |= "ds_write" in code

    def mark(s, name):
        s.end[name] = s.ops

    def cnt(s, name):
        return min(63, s.ops - s.end[name])

    def bar(s, st):
        s.e(f"s_waitcnt vmcnt({s.cnt(st)}){' lgkmcnt(0)' if s.lg else ''}\ns_barrier")
        s.lg = False

    def run(s, stages, b0, b1, H):
        for b in range(b0, b1):
            for f in H.get(('chk', b), ()):
                f(s)
            s.bar(b)
            for f in H.get(('pre', b), ()):
                f(s)
            n = b + NS - 1
            fill = H.get(('fill', b), ())
            if n < len(stages):
                s.issue(n, *stages[n], fill=fill)
            else:
                for f in fill:
                    s.extra(f)
            for f in H.get(('post', b), ()):
                f(s)

    def copy(s):
        c = Ld(s.e)
        c.ops, c.end, c.lg = s.ops, dict(s.end), s.lg
        return c


def hook(H, kind, b, f):
    H.setdefault((kind, b), []).append(f)


def l0(e, body):
    l = e.lab("Lw")
    return f"s_cmp_lg_u32 s{S_W}, 0\ns_cbranch_scc1 {l}\n{body}\n{l}:"


def exm(n):
    return f"s_mov_b64 exec, {'-1' if n >= 64 else hex((1 << n) - 1)}" if n != 32 else "s_mov_b32 exec_lo, -1\ns_mov_b32 exec_hi, 0"


def smp(sr, soff, imm=0):
    return f"buffer_load_dword v{VSM}, v{VSO}, s[{sr}:{sr+3}], {soff} offen offset:{imm} sc1"


def add_check(H, e, b, sr, soff, imm, nl, val, lead=2, slp=None):
    nm = e.lab("smp")

    def sample(ld):
        ld.e(l0(e, f"{exm(nl)}\n{smp(sr, soff, imm)}\ns_mov_b64 exec, -1"))
        ld.mark(nm)

    def check(ld):
        ld.e(l0(e, poll(e, sr, soff, imm, nl, val, ld.cnt(nm), slp)))
    hook(H, 'pre', b - lead, sample)
    hook(H, 'chk', b, check)


def poll(e, sr, soff, imm, nl, val, cnt, slp=None):
    lp, ok = e.lab("Lcp"), e.lab("Lco")
    return (f"{exm(nl)}\ns_mov_b32 s{T2}, {TMO}\ns_waitcnt vmcnt({cnt})\n{lp}:\nv_cmp_ne_u32 vcc, {val}, v{VSM}\ns_nop 1\ns_cbranch_vccz {ok}\n"
            f"s_sleep {slp or SLP}\n{smp(sr, soff, imm)}\ns_waitcnt vmcnt(0)\ns_sub_u32 s{T2}, s{T2}, 1\ns_cbranch_scc0 {lp}\n{ok}:\ns_mov_b64 exec, -1")


def cmul_sq(re, im, t):
    return f"v_mul_f32 v{t}, v{re}, v{im}\nv_mul_f32 v{re}, v{re}, v{re}\nv_fma_f32 v{re}, -v{im}, v{im}, v{re}\nv_add_f32 v{im}, v{t}, v{t}"


def cfma(dr, di, pr, pi, xr, xi, ar, ai):
    return (f"v_fma_f32 v{dr}, v{pr}, v{xr}, v{ar}\nv_fma_f32 v{di}, v{pr}, v{xi}, v{ai}\n"
            f"v_fma_f32 v{dr}, -v{pi}, v{xi}, v{dr}\nv_fma_f32 v{di}, v{pi}, v{xr}, v{di}")


def consts():
    AR_, AI_, CR_, CI_, Q32R, Q32I = 192, 193, 194, 195, 196, 197
    L2E = f"0x{f2u(math.log2(math.e)):x}"
    a = ["v_lshlrev_b32 v58, 16, v58\nv_lshlrev_b32 v59, 16, v59\nv_lshlrev_b32 v60, 16, v60",
         f"v_mul_f32 v60, {L2E}, v60\nv_exp_f32 v60, v60\ns_nop 0", rb1(60, 60),
         "v_mul_f32 v61, v60, v58\nv_mul_f32 v62, v60, v59",
         f"v_mul_f32 v61, {L2E}, v61\nv_exp_f32 v61, v61",
         f"v_mul_f32 v62, 0x{f2u(1/(2*math.pi)):x}, v62\nv_rndne_f32 v63, v62\nv_sub_f32 v62, v62, v63",
         "v_cos_f32 v63, v62\nv_sin_f32 v60, v62\ns_nop 0",
         f"v_mul_f32 v{AR_}, v61, v63\nv_mul_f32 v{AI_}, v61, v60\nv_add_f32 v63, -1.0, v{AR_}",
         "v_mul_f32 v60, v58, v58\nv_fmac_f32 v60, v59, v59\nv_rcp_f32 v60, v60",
         f"v_mul_f32 v{CR_}, v63, v58\nv_fmac_f32 v{CR_}, v{AI_}, v59",
         f"v_mul_f32 v{CI_}, v{AI_}, v58\nv_fma_f32 v{CI_}, -v63, v59, v{CI_}",
         "v_add_f32 v60, v60, v60",
         f"v_mul_f32 v{CR_}, v{CR_}, v60\nv_mul_f32 v{CI_}, v{CI_}, v60"]
    b = [f"v_mov_b32 v{Q32R}, v{AR_}\nv_mov_b32 v{Q32I}, v{AI_}"] + [cmul_sq(Q32R, Q32I, 58)] * 5
    b += [f"s_lshl_b32 s{T0}, s{S_WN}, 10\ns_add_u32 s{T0}, s{T0}, 0x{L_CON:x}\nv_lshl_add_u32 v59, v{LVC8}, 2, s{T0}",
          f"ds_write_b128 v59, v[{AR_}:{AR_+3}]\nds_write_b64 v59, v[{Q32R}:{Q32I}] offset:16"]
    c = [f"v_mov_b32 v{P64R}, v{Q32R}\nv_mov_b32 v{P64I}, v{Q32I}", cmul_sq(P64R, P64I, 58),
         f"v_mov_b32 v{P128R}, v{P64R}\nv_mov_b32 v{P128I}, v{P64I}", cmul_sq(P128R, P128I, 58),
         f"v_mov_b32 v{PKR}, v{P128R}\nv_mov_b32 v{PKI}, v{P128I}"] + [cmul_sq(PKR, PKI, 58)] * 3
    return a, b, c


def agg_off():
    return f"s_lshl_b32 s{T3}, s{S_PT}, 1\ns_add_u32 s{T3}, s{T3}, s{S_WN}\ns_lshl_b32 s{T3}, s{T3}, 12"


def agg_read():
    return (f"s_lshl_b32 s{T0}, s{S_WN}, 8\ns_add_u32 s{T0}, s{T0}, 0x{L_AGL:x}\nv_add_u32 v57, s{T0}, v{LVC8}\n"
            f"ds_read_b64 v[{VA0}:{VA0+1}], v57\nds_read_b64 v[58:59], v57 offset:512")


def agg_store():
    return ("s_waitcnt lgkmcnt(0)\n" + cfma(60, 61, P64R, P64I, VA0, VA0 + 1, 58, 59) + "\n" + agg_off() +
            f"\ns_lshl_b32 s{T0}, s{S_LT}, 8\ns_add_u32 s{T3}, s{T3}, s{T0}\n"
            f"buffer_store_dwordx2 v[60:61], v{LVC8}, s[{SL_AGG}:{SL_AGG+3}], s{T3} offen sc1")


def agg_gather():
    t = (f"v_lshrrev_b32 v57, 5, v1\nv_lshlrev_b32 v57, 3, v57\ns_sub_u32 s{T0}, s{S_LT}, 1\nv_sub_u32 v57, s{T0}, v57\n"
         f"v_lshl_add_u32 v57, v57, 8, v{LVC8}\n" + agg_off())
    for i in range(8):
        t += f"\nbuffer_load_dwordx2 v[{LWG+2*i}:{LWG+2*i+1}], v57, s[{SL_AGG}:{SL_AGG+3}], s{T3} offen sc1"
        if i < 7:
            t += "\nv_subrev_u32 v57, 256, v57"
    return t


def agg_check(e, slp=None):
    lp, ok = e.lab("Lgp"), e.lab("Lgo")
    t = f"s_mov_b32 s{T2}, {TMO}\n{lp}:\nv_max_u32 v57, v{LWG}, v{LWG+1}\n"
    for i in range(1, 8):
        t += f"v_max3_u32 v57, v57, v{LWG+2*i}, v{LWG+2*i+1}\n"
    t += (f"v_cmp_eq_u32 vcc, -1, v57\ns_nop 1\ns_cbranch_vccz {ok}\ns_sleep {slp or SLP}\n{agg_gather()}\ns_waitcnt vmcnt(0)\n"
          f"s_sub_u32 s{T2}, s{T2}, 1\ns_cbranch_scc0 {lp}\n{ok}:")
    return t


def agg_horner():
    L = []
    c, t = LWG + 14, 58
    for i in range(6, -1, -1):
        L.append(cfma(t, t + 1, P128R, P128I, c, c + 1, LWG + 2 * i, LWG + 2 * i + 1))
        c, t = t, (60 if t == 58 else 58)
    L.append(f"v_mov_b32 v{t}, v{c}\nv_mov_b32 v{t+1}, v{c+1}\ns_nop 1\nv_permlane32_swap_b32 v{t}, v{c}\nv_permlane32_swap_b32 v{t+1}, v{c+1}\ns_nop 1")
    L.append(cfma(62, 63, PKR, PKI, c, c + 1, t, t + 1))
    L.append(cfma(c, c + 1, P64R, P64I, 62, 63, VA0, VA0 + 1))
    L.append(f"s_cmp_eq_u32 s{S_WM}, 0\ns_cselect_b64 vcc, -1, 0\nv_cndmask_b32 v{c}, v{c}, v62, vcc\nv_cndmask_b32 v{c+1}, v{c+1}, v63, vcc")
    L.append(f"s_lshl_b32 s{T0}, s{S_W}, 8\ns_add_u32 s{T0}, s{T0}, 0x{L_CAR:x}\nv_add_u32 v57, s{T0}, v{LVC8}\nds_write_b64 v57, v[{c}:{c+1}]")
    return L


def row_voff(vd, sh, so):
    return (f"v_lshrrev_b32 v{vd}, 4, v1\nv_lshlrev_b32 v{vd}, 10, v{vd}\nv_and_b32 v57, 15, v1\nv_lshl_add_u32 v{vd}, v57, 2, v{vd}\nv_lshlrev_b32 v{vd}, {sh}, v{vd}\n"
            f"s_lshl_b32 s{so}, s{S_ST}, 1\ns_add_u32 s{so}, s{so}, s{S_WN}\ns_lshl_b32 s{so}, s{so}, 10\ns_lshl_b32 s{T3}, s{S_DT2}, 1\ns_add_u32 s{so}, s{so}, s{T3}\n"
            f"s_add_u32 s{so}, s{so}, s{S_WM}\ns_lshl_b32 s{so}, s{so}, {6+sh}")


def base_units():
    SX, SR, SD, SRO = 56, 60, 64, 68
    setup = "\n".join([srd_s(SX, 'x', 0, 4 * MB), srd_s(SR, 'ws', WS_ST, 65536), srd_s(SD, 'dsk', 0, 2048), row_voff(3, 1, S_RO),
                       f"v_lshlrev_b32 v57, 3, v57\nv_lshrrev_b32 v4, 4, v1\nv_lshlrev_b32 v4, 3, v4\ns_mov_b32 s{S_MSK}, 0xffff0000",
                       f"s_lshl_b32 s{T3}, s{S_DT2}, 1\ns_add_u32 s{T3}, s{T3}, s{S_WM}\ns_lshl_b32 s{T3}, s{T3}, 7\n"
                       f"buffer_load_dwordx2 v[{LDS_+2}:{LDS_+3}], v57, s[{SD}:{SD+3}], s{T3} offen",
                       f"s_lshl_b32 s{SRO}, s{S_ST}, 1\ns_add_u32 s{SRO}, s{SRO}, s{S_WN}\ns_lshl_b32 s{SRO}, s{SRO}, 11"])
    loads = []
    for i in range(16):
        b = LB + 4 * i
        loads.append(f"buffer_load_dwordx2 v[{b}:{b+1}], v3, s[{SX}:{SX+3}], s{S_RO} offen\ns_add_u32 s{S_RO}, s{S_RO}, 8192\n"
                     f"buffer_load_dwordx2 v[{b+2}:{b+3}], v4, s[{SR}:{SR+3}], s{SRO} offen offset:{(i>>1)*256+128+(i&1)*32}")
    X, Y, MB_, DS = LXX, LXX + 4, LXX + 8, LDS_

    def unp(d, a, b):
        return f"v_lshlrev_b32 v{d}, 16, v{a}\nv_and_b32 v{d+1}, s{S_MSK}, v{a}\nv_lshlrev_b32 v{d+2}, 16, v{b}\nv_and_b32 v{d+3}, s{S_MSK}, v{b}"
    cv = [rb1(Y + k, Y + k) for k in range(4)]
    G = []
    for i in range(16):
        b = LB + 4 * i
        U = []
        if i == 0:
            U.append(unp(DS, DS + 2, DS + 3))
        U.append(unp(X, b, b + 1))
        U.append(f"v_lshlrev_b32 v{MB_}, 16, v{b+2}\nv_and_b32 v{MB_+1}, s{S_MSK}, v{b+2}")
        U += [f"v_sub_f32 v{Y+k}, v{X+k}, v{MB_}" for k in range(4)] + cv
        U += [f"v_mul_f32 v{Y+k}, v{Y+k}, v{b+3}" for k in range(4)] + cv
        U += [f"v_mul_f32 v{Y+k}, v{Y+k}, v{DS+k}" for k in range(4)] + cv
        U += [f"v_add_f32 v{X+k}, v{X+k}, v{MB_+1}" for k in range(4)]
        U += [f"v_add_f32 v{b+k}, v{X+k}, v{Y+k}" for k in range(4)]
        G.append("\n".join(U))
    return setup, loads, G


SEG = {}
NW2 = [0]


def loader_pro(e):
    e(f"s_lshl_b32 s{S_M0B}, s{S_W}, 12\ns_mov_b32 s{S_SLOT}, s{S_M0B}")
    z = f"s_mov_b32 s{S_A}, 0\ns_mov_b32 s{S_B}, 0"
    SEG['bu'] = bu = Seg(8, 56, 128, 128, z)
    SEG['m1'] = Seg(16, 64, 64 * 7168, 8 * 1024 * 16, z)
    SEG['ch'] = Seg(24, 72, 128, 64 * 4096, f"s_mov_b32 s{S_A}, 0\ns_lshl_b32 s{S_B}, s{S_KH}, 22")
    SEG['uw'] = Seg(32, 80, 8 * 1024 * 16, 64 * 4096, f"s_mul_i32 s{S_A}, s{S_KH}, 0x{KO*8*1024*16:x}\ns_mul_i32 s{S_B}, s{S_KH}, 0x{KO*64*4096:x}")
    e(f"s_cmp_eq_u32 s{S_WN}, 0\ns_cselect_b32 s60, s{P['bre']}, s{P['bim']}\ns_cselect_b32 s61, s{P['bre']+1}, s{P['bim']+1}")
    e(f"s_lshl_b32 s{T3}, s{S_LT}, 7")
    ld_voff_kc(e, 8, T3, 2048, scan=True)
    e(f"s_lshl_b32 s{T3}, s{S_PT}, 6")
    ld_voff_kc(e, 12, T3, 2048, bcat=True)
    ld = Ld(e)
    ld.issue(0, bu, 0)
    srd(e, 64, 'lre', 0, 2048)
    srd(e, 68, 'lim', 0, 2048)
    srd(e, 72, 'ldt', 0, 2048)
    srd(e, SL_AGG, 'ws', WS_AGG, 131072)
    e(f"v_and_b32 v3, 31, v1\nv_lshlrev_b32 v{LVC8}, 3, v3\nv_lshlrev_b32 v3, 1, v3\ns_lshl_b32 s{T3}, s{S_PT}, 1\ns_add_u32 s{T3}, s{T3}, s{S_WN}\ns_lshl_b32 s{T0}, s{T3}, 6")
    ld.extra(f"buffer_load_ushort v58, v3, s[64:67], s{T0} offen\nbuffer_load_ushort v59, v3, s[68:71], s{T0} offen\nbuffer_load_ushort v60, v3, s[72:75], s{T0} offen")
    e(f"s_lshl_b32 s{T3}, s{T3}, 4\ns_add_u32 s{T3}, s{T3}, s{S_LT}\ns_lshl_b32 s{T3}, s{T3}, 8\nv_mov_b32 v6, -1\nv_mov_b32 v7, -1")
    ld.extra(f"buffer_store_dwordx2 v[6:7], v{LVC8}, s[{SL_AGG}:{SL_AGG+3}], s{T3} offen sc1")
    ts(e, 10)
    e(f"s_waitcnt vmcnt({ld.ops})")
    ts(e, 11)
    x = E()
    ln_row(x)
    L = "\n".join(x.L).split("\n")
    h = len(L) // 2
    ld.issue(1, bu, 1, fill=L[:h])
    ld.issue(2, bu, 2, fill=L[h:])
    ln_tail(e)
    return ld


def loader(e, ld, PUB):
    bu, m1, ch, uw = SEG['bu'], SEG['m1'], SEG['ch'], SEG['uw']

    def sub(f):
        x = E()
        f(x)
        return x.L

    def org(x, t, sh):
        x(f"s_lshl_b32 s{T3}, s{t}, {sh}")
        return T3

    def set_m1(x):
        srd(x, 64, 'w1', 0, 2048 * 3584 * 2)
        srd(x, 68, 'ws', WS_HH - 4096, 4 * MB + 4096)
        ld_voff_ks(x, 16, org(x, S_FT, 7), 7168)
        ld_voff_kb(x, 20, org(x, S_DT1, 7), 1024)
        srd(x, SL_FLG, 'ws', WS_FLG, 16384)
        srd(x, SL_DBG, 'dbg', 0, 256)
        x(f"v_lshlrev_b32 v{VSO}, 2, v1\nv_mov_b32 v6, 1\ns_lshl_b32 s{T0}, s2, 2\nv_lshl_add_u32 v7, v1, 10, s{T0}")
        x(f"s_and_b32 s{S_CNT}, s2, 3\ns_lshl_b32 s{S_CNT}, s{S_CNT}, 10")

    def set_ch(x):
        x(f"s_cmp_eq_u32 s{S_KH}, 0\ns_cselect_b32 s72, s{P['cre']}, s{P['cim']}\ns_cselect_b32 s73, s{P['cre']+1}, s{P['cim']+1}")
        x(f"s_mov_b32 s74, 0x{2*MB:x}\ns_mov_b32 s75, 0x20000")
        srd(x, 76, 'ws', WS_HP, 8 * MB)
        ld_voff_kc(x, 24, org(x, S_DT2, 7), 2048, scan=True)
        ld_voff_kt(x, 28, S_ST)

    def set_uw(x):
        srd(x, 80, 'ws', WS_U - 4096, 1024 * 3584 * 2 + 4096)
        srd(x, 84, 'w2', 0, 3584 * 2048 * 2)
        ld_voff_kb(x, 32, org(x, S_DT2, 7), 1024)
        ld_voff_ks(x, 36, org(x, S_ST, 7), 4096)
        x(f"s_lshl_b32 s30, s{S_ST}, 8\ns_add_u32 s30, s30, {F_H}")
        x(f"s_lshl_b32 s31, s{S_DT2}, 9\ns_mul_i32 s{T0}, s{S_KH}, {8*KO}\ns_add_u32 s31, s31, s{T0}\ns_add_u32 s31, s31, {F_U}")

    H = {}
    ts(e, 12)
    hook(H, 'pre', 0, lambda l: ts(e, 13))
    ca, cb, cc = consts()
    H[('fill', 0)] = sub(set_m1)
    H[('fill', 1)] = ca
    H[('fill', 2)] = cb
    H[('fill', 3)] = cc
    H[('fill', 4)] = sub(set_ch)
    H[('fill', 5)] = sub(set_uw)
    pfl = f"buffer_load_dwordx4 v[40:43], v2, s[64:67], s{S_CNT} offen {PFM}\ns_add_u32 s{S_CNT}, s{S_CNT}, 0x{MB:x}"

    def spf(H, b0, b1, sr, n, nw, st=0):
        if "nopf" in OPT or "nospf" in OPT or not n:
            return st + (b1 - b0) * n * SG * nw
        for b in range(b0, b1):
            f = H.setdefault(('fill', b), [])
            if b == b0:
                f.append(f"s_lshl_b32 s6, s2, 2\ns_add_u32 s6, s6, s{S_W}\ns_mul_i32 s6, s6, {n*SG}\ns_add_u32 s6, s6, 0x{st:x}")
            if SG == 128:
                f.extend(f"s_buffer_load_dwordx2 s[8:9], s[{sr}:{sr+3}], s6 offset:{i*SG+60}" for i in range(n))
            else:
                f.extend(f"s_buffer_load_dword s8, s[{sr}:{sr+3}], s6 offset:{i*SG}" for i in range(n))
            f.append(f"s_add_u32 s6, s6, 0x{n*SG*nw:x}")
        return st + (b1 - b0) * n * SG * nw
    W1S = spf(H, SP0, SP1, 64, NP1, 1024)

    def dsample(l):
        e(l0(e, f"{exm(4)}\n{smp(SL_DBG, 0)}\ns_mov_b64 exec, -1"))
        l.mark('dbg')
    hook(H, 'pre', DSM, dsample)
    hook(H, 'pre', ARR + 1, lambda l: e(l0(e, poll(e, SL_DBG, 0, 0, 4, "1", l.cnt('dbg')) +
                                           f"\ns_mov_b64 exec, 15\nbuffer_store_dword v6, v7, s[{SL_FLG}:{SL_FLG+3}], 0 offen sc1\ns_mov_b64 exec, -1")))
    nbu = 16 - NS + 1
    asm = f"buffer_load_dwordx4 v[40:43], v2, s[{SL_FLG}:{SL_FLG+3}], s{S_CNT} offen sc1"

    def asample(l):
        e(l0(e, asm))
        l.mark('arr')

    def acheck(l):
        lp, ok = e.lab("Lap"), e.lab("Lao")
        e(l0(e, f"s_mov_b32 s{T2}, {TMO}\ns_waitcnt vmcnt({l.cnt('arr')})\n{lp}:\nv_and_b32 v40, v40, v41\nv_and_b32 v42, v42, v43\nv_and_b32 v40, v40, v42\n"
                f"v_cmp_ne_u32 vcc, 1, v40\ns_nop 1\ns_cbranch_vccz {ok}\ns_sleep {SLP}\n{asm}\ns_waitcnt vmcnt(0)\ns_sub_u32 s{T2}, s{T2}, 1\ns_cbranch_scc0 {lp}\n{ok}:"))
    hook(H, 'pre', nbu - ALD, asample)
    hook(H, 'chk', nbu, acheck)
    stA = [(bu, j) for j in range(16)]
    ld.run(stA, 0, nbu, H)
    for f in H.pop(('chk', nbu)):
        f(ld)
    spare, common = e.lab("Lsp"), e.lab("Lcm")
    e(f"s_cmp_ge_u32 s{S_IDX}, 28\ns_cbranch_scc1 {spare}")
    sp = ld.copy()
    stB = stA + [(m1, j) for j in range(32)] + [(ch, j) for j in range(NS - 1)]
    hook(H, 'pre', PUB, lambda l: e(agg_read()))
    hook(H, 'post', PUB, lambda l: l.extra(agg_store()))
    hook(H, 'pre', PUB + GA, lambda l: l.extra(agg_gather()))
    hook(H, 'pre', PUB + GA + 3, lambda l: e(agg_check(e)))
    H[('fill', PUB + GA + 3)] = agg_horner()
    add_check(H, e, 45, SL_FLG, "s30", 0, 32, "1")
    b0 = PUB + GA + 4
    W1E = 14 * MB - SW1 * NP2 * SG * 896
    spf(H, b0, b0 + SW1, 64, NP2, 896, W1E)
    W2S = spf(H, b0 + SW1, 48, 84, NP2, 896) + NW2[0] * 896 * 1024
    HC = {}
    W2S = spf(HC, 0, SW2, 84, NP2, 1024, W2S)
    print("W1S, W1E, W2S", W1S / MB, W1E / MB, W2S / MB, file=sys.stderr)
    ld.run(stB, nbu, 48, H)
    e(f"s_branch {common}")
    e(f"{spare}:")
    rest = sum(1 for b in PFS if b >= 15)
    sp.run(stA, nbu, 16, {k: v for k, v in H.items() if k[0] == 'fill'})
    e("s_barrier\ns_barrier")
    e(agg_read())
    e(agg_store())
    e(f"s_lshl_b32 s{S_CNT}, s2, 2\ns_add_u32 s{S_CNT}, s{S_CNT}, s{S_W}\ns_lshl_b32 s{S_CNT}, s{S_CNT}, 10\ns_add_u32 s{S_CNT}, s{S_CNT}, 0x{(14-rest)*MB:x}")
    for i in range(rest):
        e(pfl)
    e(f"s_sub_u32 s{S_RO}, s{S_IDX}, 28\ns_lshl_b32 s{S_RO}, s{S_RO}, 3\ns_add_u32 s{S_RO}, s{S_RO}, s{S_XCD}\ns_lshl_b32 s{S_RO}, s{S_RO}, 2\ns_add_u32 s{S_RO}, s{S_RO}, s{S_W}\ns_lshl_b32 s{S_RO}, s{S_RO}, 10")

    def pf_loop(nm, sz, st=0, en=None):
        en = min(sz, en or sz)
        if "nopf" in OPT or st >= en:
            return
        srd(e, 56, nm, 0, sz)
        l = e.lab("Lpf")
        e(f"s_add_u32 s{T2}, s{S_RO}, 0x{st:x}\ns_mov_b32 s{S_CNT}, {(en-st+4*131072-1)//(4*131072)}\n{l}:")
        for i in range(4):
            e(f"buffer_load_dwordx4 v[40:43], v2, s[56:59], s{T2} offen {PFM}\ns_add_u32 s{T2}, s{T2}, 0x20000")
        e(f"s_waitcnt vmcnt({PFW})\ns_sub_u32 s{S_CNT}, s{S_CNT}, 1\ns_cmp_lg_u32 s{S_CNT}, 0\ns_cbranch_scc1 {l}")
    W1 = 14 * MB if PFS else W1S
    pf_loop('w1', 14 * MB, W1, min(W1E, W1 + 3 * MB))
    e(agg_gather() + "\ns_waitcnt vmcnt(0)")
    e(agg_check(e, 16))
    e("\n".join(agg_horner()))
    e("s_waitcnt lgkmcnt(0)\ns_barrier")
    pf_loop('w1', 14 * MB, W1 + 3 * MB, W1E)
    pf_loop('cre', 2 * MB)
    pf_loop('cim', 2 * MB)
    ts(e, 7)
    pf_loop('w2', 3584 * 2048 * 2, W2S)
    ts(e, 8)
    e(l0(e, smp(SL_FLG, "s30") + "\n" + poll(e, SL_FLG, "s30", 0, 64, "1", 0, 16)))
    e("s_barrier")
    ts(e, 9)
    ld = Ld(e)
    for j in range(NS - 1):
        ld.issue(j, ch, j)
    e(f"{common}:")
    stC = [(ch, j) for j in range(16)]
    H = HC
    add_check(H, e, 5, SL_FLG, "s30", 128, 32, "1")
    add_check(H, e, nbu, SL_FLG, "s31", 0, 16, "1")
    ld.run(stC, 0, nbu, H)
    for f in H.pop(('chk', nbu)):
        f(ld)
    snd = e.lab("Lls")
    e(f"s_cmp_eq_u32 s{S_KH}, 1\ns_cbranch_scc1 {snd}")
    sd = ld.copy()

    def uchecks(n):
        H = {}
        for g in range(1, (n + 7) // 8):
            add_check(H, e, nbu + 8 * g, SL_FLG, "s31", 64 * g, 2 * min(8, n - 8 * g), "1")
        return H
    T = 16 + KO
    st = stC + [(uw, j) for j in range(KO)]
    H = uchecks(KO)
    setup, loads, G = base_units()
    hook(H, 'post', BL0 - 1, lambda l: l.extra(setup))
    for i in range(16):
        H.setdefault(('fill', BL0 + i), []).append(loads[i])
        H.setdefault(('fill', BL0 + i + 4), []).append(G[i])
    assert BL0 + 20 <= T - 2 * NS + 1

    def xsetup(l):
        srd(e, 56, 'ws', WS_XCH, 4 * MB)
        srd(e, 64, 'out', 0, 8 * MB)
        e(row_voff(3, 2, S_RO))
        e(f"s_lshl_b32 s{T3}, s{S_ST}, 3\ns_add_u32 s{T3}, s{T3}, s{S_DT2}\ns_lshl_b32 s{T3}, s{T3}, 2\ns_add_u32 s{T3}, s{T3}, s{S_W}\n"
          f"s_lshl_b32 s{S_CNT}, s{T3}, 13\ns_lshl_b32 s{T3}, s{T3}, 2\ns_add_u32 s{T3}, s{T3}, {F_X}\nv_mov_b32 v{VXO}, s{T3}")
        e("v_bfe_u32 v4, v1, 2, 1\nv_lshlrev_b32 v4, 12, v4\nv_bfe_u32 v57, v1, 1, 1\nv_lshl_add_u32 v4, v57, 10, v4\nv_bfe_u32 v57, v1, 3, 1\nv_lshl_add_u32 v4, v57, 9, v4\n"
          "v_lshrrev_b32 v57, 4, v1\nv_lshl_add_u32 v4, v57, 4, v4\nv_and_b32 v57, 1, v1\nv_lshl_add_u32 v4, v57, 3, v4")
        e(f"s_mul_i32 s{T0}, s{S_W}, {64*272}\nv_lshrrev_b32 v6, 4, v1\nv_mul_u32_u24 v6, 272, v6\nv_and_b32 v7, 15, v1\nv_lshl_add_u32 v6, v7, 4, v6\nv_add_u32 v6, s{T0}, v6")
    hook(H, 'post', BL0 + 16, xsetup)
    xs = f"buffer_load_dword v{VXS}, v{VXO}, s[{SL_FLG}:{SL_FLG+3}], 0 offen sc1"
    pl = "\n".join(f"buffer_load_dwordx2 v[{LPT+2*i}:{LPT+2*i+1}], v4, s[56:59], s{S_CNT} offen offset:{(i>>3)*2048+(i&7)*64}" for i in range(16)) + "\n"
    tst = f"v_cmp_ne_u32 vcc, 1, v{VXS}\ns_nop 1\ns_cbranch_vccz "
    hook(H, 'pre', T - 2 * NS + 1, lambda l: l.extra(xs))
    ld.run(st, nbu, T - NS + 1, H)
    early, mid, fin = e.lab("Lxe"), e.lab("Lxm"), e.lab("Lxf")
    e(tst + early)
    l2 = ld.copy()
    ld.extra(xs)
    ld.run(st, T - NS + 1, T - 1, {})
    e("s_waitcnt vmcnt(0)\ns_barrier")
    e(tst + mid)
    e(xs + "\ns_barrier")
    lp = e.lab("Lxp")
    e(f"s_mov_b32 s{T2}, {TMO*4}\n{lp}:\ns_waitcnt vmcnt(0)\n{tst}{lp}_ok\ns_sleep 2\n{xs}\ns_sub_u32 s{T2}, s{T2}, 1\ns_cbranch_scc0 {lp}\n{lp}_ok:")
    e(pl + f"s_branch {fin}")
    e(f"{mid}:\n{pl}s_barrier\ns_branch {fin}")
    e(f"{early}:")
    l2.extra(pl)
    l2.run(st, T - NS + 1, T, {})
    e("s_barrier")
    e(f"{fin}:")
    ts(e, 5)
    e("s_waitcnt vmcnt(0)")
    for i in range(64):
        e(f"v_fma_mix_f32 v{LB+i}, v{LPT+i//2}, 1.0, v{LB+i} op_sel:[{i&1},0,0] op_sel_hi:[1,0,0]")
    e("s_barrier")
    for i in range(16):
        e(f"ds_read_b128 v[{LR+4*i}:{LR+4*i+3}], v6 offset:{i*4*272}")
    for i in range(16):
        a = 4 * i
        e(f"s_waitcnt lgkmcnt({15-i})")
        e(f"v_pk_add_f32 v[{LR+a}:{LR+a+1}], v[{LR+a}:{LR+a+1}], v[{LB+a}:{LB+a+1}]\nv_pk_add_f32 v[{LR+a+2}:{LR+a+3}], v[{LR+a+2}:{LR+a+3}], v[{LB+a+2}:{LB+a+3}]")
        e(f"buffer_store_dwordx4 v[{LR+a}:{LR+a+3}], v3, s[64:67], s{S_RO} offen {OUTM}\ns_add_u32 s{S_RO}, s{S_RO}, 16384")
    ts(e, 6)
    ts_store(e)
    e("s_endpgm")
    e(f"{snd}:")
    T = 16 + 56 - KO
    st = stC + [(uw, j) for j in range(56 - KO)]
    sd.run(st, nbu, T, uchecks(56 - KO))
    e("s_barrier")
    ts(e, 5)
    ts(e, 6)
    ts_store(e)
    e("s_endpgm")


VC8 = 7
AR, AI, CR, CI, P32R, P32I = 8, 9, 10, 11, 12, 13
MLO, MHI, RLO, RHI = 14, 15, 30, 31
NBR, NBI, LOR, LOI = 32, 33, 34, 35
S_G32, S_CH, S_DONE = 79, 80, 84
S_FHo, S_FUo, S_FXo = 76, 77, 78
SR_HH, SR_FLG, SR_HP, SR_U, SR_B1, SR_ST, SR_PF, S_PFO = 56, 60, 64, 68, 72, 88, 92, 85


class Opnd:
    def __init__(s, mode, lds_off, base, cur, perm):
        s.mode, s.lds_off, s.base, s.cur, s.perm = mode, lds_off, base, cur, perm
        s.nread = 4 if mode in ('KS', 'KT') else 2


def cw_base(e, op, s_wx, t0=36, t1=3, t2=4, t3=37):
    va = op.base
    if op.mode == 'KB':
        e(f"v_and_b32 v{t0}, 31, v1\nv_lshrrev_b32 v{t1}, 5, v1\nv_lshlrev_b32 v{t0}, 4, v{t0}\nv_lshl_add_u32 v{t0}, v{t1}, 11, v{t0}")
        e(f"s_lshl_b32 s{T0}, s{s_wx}, 10\ns_add_u32 s{T0}, s{T0}, {op.lds_off}\nv_add_u32 v{va}, s{T0}, v{t0}")
    elif op.mode == 'KT':
        e(f"v_bfe_u32 v{t0}, v1, 4, 1\nv_bfe_u32 v{t1}, v1, 1, 1\nv_lshl_add_u32 v{t0}, v{t0}, 1, v{t1}")
        e(f"v_bfe_u32 v{t1}, v1, 2, 2\nv_lshrrev_b32 v{t2}, 5, v1\nv_lshl_add_u32 v{t1}, v{t2}, 3, v{t1}")
        e(f"v_lshlrev_b32 v{t2}, 2, v{t0}\nv_xor_b32 v{t1}, v{t1}, v{t2}\nv_lshlrev_b32 v{t1}, 4, v{t1}\nv_lshl_add_u32 v{t1}, v{t0}, 10, v{t1}")
        e(f"v_and_b32 v{t2}, 1, v1\nv_lshl_add_u32 v{t1}, v{t2}, 3, v{t1}")
        e(f"s_lshl_b32 s{T0}, s{s_wx}, 13\ns_add_u32 s{T0}, s{T0}, {op.lds_off}\nv_add_u32 v{va}, s{T0}, v{t1}")
    elif op.mode == 'KC':
        e(f"v_and_b32 v{t0}, 31, v1\nv_lshrrev_b32 v{t1}, 5, v1")
        if op.perm == 'scan':
            e(f"v_bfe_u32 v{t2}, v{t0}, 2, 1\nv_lshlrev_b32 v{t2}, 5, v{t2}\nv_lshrrev_b32 v{t3}, 3, v{t0}")
            e(f"v_lshl_add_u32 v{t2}, v{t3}, 2, v{t2}\nv_and_b32 v{t0}, 3, v{t0}\nv_add_u32 v{t0}, v{t0}, v{t2}")
            e(f"v_bfe_u32 v{t2}, v{t0}, 1, 2\nv_bfe_u32 v{t3}, v{t0}, 5, 1\nv_lshl_add_u32 v{t2}, v{t3}, 2, v{t2}")
        else:
            e(f"v_bfe_u32 v{t2}, v{t0}, 1, 3")
        e(f"s_lshl_b32 s{T0}, s{s_wx}, 6\nv_add_u32 v{t0}, s{T0}, v{t0}")
        e(f"v_xor_b32 v{t1}, v{t1}, v{t2}\nv_lshlrev_b32 v{t1}, 4, v{t1}")
        e(f"v_lshl_add_u32 v{t0}, v{t0}, 7, v{t1}\nv_add_u32 v{va}, {op.lds_off}, v{t0}")
    else:
        e(f"v_bfe_u32 v{t0}, v1, 2, 2\nv_lshrrev_b32 v{t1}, 5, v1\nv_lshl_add_u32 v{t1}, v{t1}, 3, v{t0}\nv_lshlrev_b32 v{t1}, 8, v{t1}")
        if op.perm == 'nat':
            e(f"v_bfe_u32 v{t2}, v1, 4, 1\nv_lshlrev_b32 v{t2}, 5, v{t2}\nv_and_b32 v{t3}, 3, v1\nv_lshl_add_u32 v{t2}, v{t3}, 3, v{t2}")
        else:
            e(f"v_bfe_u32 v{t2}, v1, 4, 1\nv_lshlrev_b32 v{t2}, 5, v{t2}\nv_and_b32 v{t3}, 1, v1\nv_lshl_add_u32 v{t2}, v{t3}, 4, v{t2}")
            e(f"v_bfe_u32 v{t3}, v1, 1, 1\nv_lshl_add_u32 v{t2}, v{t3}, 3, v{t2}")
        e(f"v_add_u32 v{t1}, v{t1}, v{t2}\nv_add_u32 v{t1}, {op.lds_off}, v{t1}")
        e(f"s_lshl_b32 s{T0}, s{s_wx}, 1\nv_xor_b32 v{t2}, s{T0}, v{t0}\nv_lshl_add_u32 v{va}, v{t2}, 6, v{t1}")


def cur_addr(op):
    L = [f"v_add_u32 v{op.cur}, s{S_SLOT}, v{op.base}"]
    if op.mode == 'KC':
        L += [f"v_xor_b32 v{op.cur+kk}, {kk<<5}, v{op.cur}" for kk in range(1, 4)]
    elif op.mode in ('KS', 'KT'):
        L += [f"v_xor_b32 v{op.cur+1}, 64, v{op.cur}"]
    return L


FR = 40


def frag_reads(op, kk, dst):
    R = []
    for j in range(2):
        d = dst + 4 * j
        if op.mode == 'KB':
            R.append(f"ds_read_b128 v[{d}:{d+3}], v{op.cur} offset:{kk*4096+j*512}")
        elif op.mode == 'KC':
            jo = 2048 if op.perm == 'scan' else 4096
            R.append(f"ds_read_b128 v[{d}:{d+3}], v{op.cur+kk} offset:{j*jo}")
        elif op.mode == 'KT':
            for t in range(2):
                R.append(f"ds_read_b64_tr_b16 v[{d+2*t}:{d+2*t+1}], v{op.cur+t} offset:{kk*256+j*4096}")
        else:
            for t in range(2):
                R.append(f"ds_read_b64_tr_b16 v[{d+2*t}:{d+2*t+1}], v{op.cur+j} offset:{kk*4096+t*1024}")
    return R


def reads(ops, kk):
    A, B = ops
    d = FR + 16 * kk
    a, b = frag_reads(A, kk, d), frag_reads(B, kk, d + 8)
    ha, hb = len(a) // 2, len(b) // 2
    return a[:ha] + b[:hb] + b[hb:] + a[ha:]


def mfmas(acc, kk, zero=False):
    d = FR + 16 * kk
    M = []
    for j in range(2):
        for jn in range(2):
            a = acc + 32 * j + 16 * jn
            M.append(f"v_mfma_f32_32x32x16_bf16 v[{a}:{a+15}], v[{d+4*j}:{d+4*j+3}], v[{d+8+4*jn}:{d+8+4*jn+3}], " + ("0" if zero else f"v[{a}:{a+15}]"))
    return M


TRANS = ("v_exp_f32", "v_rcp_f32", "v_sqrt_f32", "v_sin_f32", "v_cos_f32", "v_log_f32", "v_mul_lo_u32")


def ucost(u):
    c = 0
    for l in u.split("\n"):
        l = l.strip()
        if not l or l.endswith(":"):
            continue
        if l.startswith("s_cbranch"):
            break
        c += 8 if l.startswith(TRANS) or l.startswith(("buffer_", "ds_")) else 4
    return c


class Side:
    def __init__(s, items=(), bud=BUD):
        s.q = list(items)
        s.until = 0
        s.credit = 0
        s.bud = bud
        s.notes = {}
        s.g = 0

    def take(s, budget):
        out = []
        g = s.g
        s.g += 1
        nxtbar = (g // 16) * 16 + 12 if g % 16 < 12 else (g // 16 + 1) * 16 + 12
        if g < s.until:
            return out
        s.credit = min(s.credit + budget, budget + 8)
        while s.q:
            u = s.q[0]
            if isinstance(u, tuple):
                s.q.pop(0)
                if u[0] == 'note':
                    s.notes[u[1]] = nxtbar // 16 + 1
                    continue
                s.until = {'gap': lambda: g + u[1], 'bar': lambda: (u[1]() - 1) * 16 + 12, 'lds': lambda: nxtbar}[u[0]]()
                if s.until > g:
                    s.credit = 0
                    break
                continue
            c = ucost(u)
            if c > s.credit and (out or c <= 32):
                break
            out.append(s.q.pop(0))
            s.credit -= c
        return out

    def flush(s, e):
        for u in s.q:
            if not isinstance(u, tuple):
                e(u)
            elif u[0] == 'lds':
                e("s_waitcnt lgkmcnt(0)")
            elif u[0] == 'note':
                e("s_waitcnt lgkmcnt(0)\ns_barrier")
            elif u[0] == 'bar':
                e("s_barrier")
        s.q = []


def step(e, cur, nxt, acc, side=None, zero=False, pre=None, post=None):
    nr = cur[0].nread + cur[1].nread

    def inter(M, R):
        per = (len(R) + 3) // 4
        for i in range(4):
            e(M[i])
            rr = R[i * per:(i + 1) * per]
            for r in rr:
                e(r)
            if side is not None:
                rc = sum(8 if r.startswith("ds_read_b128") else RCT if r.startswith("ds_") else 4 for r in rr)
                for u in side.take(max(side.bud - rc, 0)):
                    e(u)

    e(f"s_waitcnt lgkmcnt({nr})")
    inter(mfmas(acc, 0, zero), reads(cur, 2))
    e(f"s_waitcnt lgkmcnt({nr})")
    inter(mfmas(acc, 1), reads(cur, 3))
    e(f"s_add_u32 s{S_SLOT}, s{S_SLOT}, {STG}\ns_cmp_ge_u32 s{S_SLOT}, {NS*STG}\ns_cselect_b32 s{S_SLOT}, 0, s{S_SLOT}")
    e(f"s_waitcnt lgkmcnt({nr})")
    inter(mfmas(acc, 2), (cur_addr(nxt[0]) + cur_addr(nxt[1])) if nxt else [])
    for f in pre or ():
        f()
    e("s_waitcnt lgkmcnt(0)\ns_barrier")
    inter(mfmas(acc, 3), (reads(nxt, 0) + reads(nxt, 1)) if nxt else [])
    for f in post or ():
        f()


def rolled(e, ops, acc, n, post=None):
    l = e.lab("Lg")
    e(f"s_mov_b32 s{S_CNT}, {n}" if isinstance(n, int) else n)
    e(f".p2align 5\n{l}:")
    step(e, ops, ops, acc, post=post)
    e(f"s_sub_u32 s{S_CNT}, s{S_CNT}, 1\ns_cmp_lg_u32 s{S_CNT}, 0\ns_cbranch_scc1 {l}")


def gemm_start(e, ops):
    for t in cur_addr(ops[0]) + cur_addr(ops[1]):
        e(t)
    e("s_waitcnt lgkmcnt(0)\ns_barrier")
    for r in reads(ops, 0) + reads(ops, 1):
        e(r)


def gemm(e, ops, nxt, acc, n, side, pre={}, post={}, name="", rpost=None):
    k = 0
    last = max(list(pre) + list(post) + [0])
    while k < n - 1 and (k == 0 or k <= last or (side is not None and side.q)):
        step(e, ops, ops, acc, side, k == 0, pre.get(k), post.get(k))
        k += 1
    print(f"{name}: unrolled {k} steps, side left {len(side.q) if side else 0}", file=sys.stderr)
    if n - 1 - k >= 2:
        rolled(e, ops, acc, n - 1 - k, rpost)
    else:
        for _ in range(n - 1 - k):
            step(e, ops, ops, acc, post=rpost)
    if side is not None:
        side.flush(e)
    step(e, ops, nxt, acc)
    return n - 1 - k


def gre(t):
    return ACB + 32 * (t >> 4) + (t & 15)


def gim(t):
    return gre(t) + 16


def flag_units(e, so, tries, gap):
    st = (f"v_mov_b32 v36, 0\nv_mov_b32 v3, 1\ns_mov_b64 exec, 1\nbuffer_store_dword v3, v36, s[{SR_FLG}:{SR_FLG+3}], s{so} offen sc1\n"
          f"s_mov_b64 exec, -1\ns_mov_b32 s{S_DONE}, 1")
    S = [f"s_mov_b32 s{S_DONE}, 0"]
    for i in range(tries):
        l = e.lab("Lf")
        S.append(('gap', gap))
        S.append(f"s_getreg_b32 s{T3}, hwreg(HW_REG_IB_STS)\ns_and_b32 s{T3}, s{T3}, 0xc0000f\ns_or_b32 s{T3}, s{T3}, s{S_DONE}\ns_cbranch_scc1 {l}\n{st}\n{l}:")
    l = e.lab("Lf")
    S.append(('gap', gap))
    S.append(f"s_cmp_lg_u32 s{S_DONE}, 0\ns_cbranch_scc1 {l}\ns_waitcnt vmcnt(0)\n{st}\n{l}:")
    return S


def pf_org():
    return f"s_lshl_b32 s{S_PFO}, s2, 2\ns_add_u32 s{S_PFO}, s{S_PFO}, s{S_W}\ns_lshl_b32 s{S_PFO}, s{S_PFO}, 10"


def pf_ld(d, inc):
    return f"buffer_load_dwordx4 v[{d}:{d+3}], v6, s[{SR_PF}:{SR_PF+3}], s{S_PFO} offen {PFM}\ns_add_u32 s{S_PFO}, s{S_PFO}, 0x{inc:x}"


def side_scan(e, carbar, spare=False):
    S = [f"s_waitcnt vmcnt({sum(1 for b in PFS if 16 - NS <= b < 15)})\nv_xor_b32 v{NBR}, 0x80000000, v{NBR}\nv_xor_b32 v{NBI}, 0x80000000, v{NBI}\ns_nop 7\ns_nop 7"]
    er, ei, nr, ni = 104, 105, 106, 107
    for t in range(32):
        m, r, bc = (MLO, RLO, t) if t < 16 else (MHI, RHI, t - 16)
        S.append(f"v_fmac_f32_dpp v{gre(t)}, v{m}, v{NBR} row_newbcast:{bc} {DPP}\nv_fmac_f32_dpp v{gim(t)}, v{m}, v{NBI} row_newbcast:{bc} {DPP}")
        S.append(f"v_mul_f32_dpp v{gre(t)}, v{r}, v{gre(t)} row_newbcast:{bc} {DPP}\nv_mul_f32_dpp v{gim(t)}, v{r}, v{gim(t)} row_newbcast:{bc} {DPP}")
        if t == 0:
            S.append(f"v_mov_b32 v{er}, v{gre(0)}\nv_mov_b32 v{ei}, v{gim(0)}")
        else:
            S.append(f"v_fma_f32 v{nr}, v{AR}, v{er}, v{gre(t)}\nv_fma_f32 v{ni}, v{AR}, v{ei}, v{gim(t)}")
            S.append(f"v_fma_f32 v{nr}, -v{AI}, v{ei}, v{nr}\nv_fma_f32 v{ni}, v{AI}, v{er}, v{ni}")
            er, nr = nr, er
            ei, ni = ni, ei
    S.append(f"v_mov_b32 v{LOR}, v{er}\nv_mov_b32 v{LOI}, v{ei}\ns_nop 1\n"
             f"v_permlane32_swap_b32 v{LOR}, v{er}\nv_permlane32_swap_b32 v{LOI}, v{ei}\ns_nop 1")
    S.append(cfma(110, 111, P32R, P32I, LOR, LOI, er, ei))
    S.append(f"s_lshl_b32 s{T3}, s{S_W}, 8\ns_add_u32 s{T3}, s{T3}, 0x{L_AGL:x}\nv_add_u32 v38, s{T3}, v{VC8}\nds_write_b64 v38, v[110:111]")
    S.append(('note', 'pub'))
    S.append(f"v_lshrrev_b32 v2, 5, v1\nv_lshlrev_b32 v2, 12, v2\nv_lshl_add_u32 v2, v{VC8}, 1, v2")
    S.append(f"s_lshl_b32 s81, s{S_PT}, 5\ns_add_u32 s81, s81, s{S_CH}\ns_lshl_b32 s81, s81, 4\ns_add_u32 s81, s81, s{S_WN}\ns_lshl_b32 s81, s81, 9\ns_add_u32 s82, s81, 0x400000")
    S.append(('bar', carbar))
    cr, ci, tr, ti = 104, 105, 106, 107
    S.append(f"ds_read_b64 v[{cr}:{ci}], v38 offset:{L_CAR-L_AGL}")
    if not spare:
        BQ = 112
        S.append(f"v_lshrrev_b32 v36, 5, v1\nv_lshlrev_b32 v36, 4, v36\ns_lshl_b32 s{T3}, s{S_FT}, 1\ns_add_u32 s{T3}, s{T3}, s{S_WM}\ns_lshl_b32 s{T3}, s{T3}, 7")
        S += [f"buffer_load_dwordx4 v[{BQ+4*i}:{BQ+3+4*i}], v36, s[{SR_B1}:{SR_B1+3}], s{T3} offen offset:{32*i}" for i in range(4)]
    S.append(('lds',))
    S.append(cfma(tr, ti, P32R, P32I, cr, ci, LOR, LOI))
    S.append(f"v_cmp_lt_u32 vcc, 31, v1\ns_nop 1\nv_cndmask_b32 v{cr}, v{cr}, v{tr}, vcc\nv_cndmask_b32 v{ci}, v{ci}, v{ti}, vcc")
    gr, gi, nr, ni = cr, ci, tr, ti
    for t in range(32):
        S.append(f"v_fma_f32 v{nr}, v{AR}, v{gr}, v{gre(t)}\nv_fma_f32 v{ni}, v{AR}, v{gi}, v{gim(t)}")
        S.append(f"v_fma_f32 v{nr}, -v{AI}, v{gi}, v{nr}\nv_fma_f32 v{ni}, v{AI}, v{gr}, v{ni}")
        gr, nr = nr, gr
        gi, ni = ni, gi
        S.append(f"v_mul_f32 v{gre(t)}, v{CR}, v{gr}\nv_mul_f32 v{gim(t)}, v{CR}, v{gi}")
        S.append(f"v_fma_f32 v{gre(t)}, -v{CI}, v{gi}, v{gre(t)}\nv_fma_f32 v{gim(t)}, -v{CI}, v{gr}, -v{gim(t)}")
        if t % 8 == 7:
            b = t - 7
            for g, so in ((gre, "s81"), (gim, "s82")):
                S.append("\n".join(f"v_cvt_pk_bf16_f32 v{g(b)+i}, v{g(b+2*i)}, v{g(b+2*i+1)}" for i in range(4)))
                S.append(f"buffer_store_dwordx4 v[{g(b)}:{g(b)+3}], v2, s[{SR_HP}:{SR_HP+3}], {so} offen offset:{128*b} sc1")
                if SKS and (t < 31 or g is gre):
                    S.append(('gap', SKS))
    S += flag_units(e, S_FHo, 0 if spare else 3, 16)
    if not spare:
        S.append(srd_s(SR_PF, 'w2', 0, 3584 * 2048 * 2))
        S.append(pf_org())
    return S


def side_gelu(e):
    S = []
    C0 = -2.0 * math.sqrt(2.0 / math.pi) * math.log2(math.e)
    BQ = 112
    S.append(f"s_mov_b32 s82, 0x{f2u(C0*0.044715):x}\nv_mov_b32 v8, 0x{f2u(C0):x}\nv_mov_b32 v12, 0xffff0000\ns_nop 7")
    S.append("v_and_b32 v2, 31, v1\nv_lshrrev_b32 v3, 5, v1\nv_lshlrev_b32 v3, 10, v3\nv_add_u32 v2, v2, v3\nv_lshlrev_b32 v2, 4, v2")
    S.append(f"s_lshl_b32 s{T3}, s{S_FT}, 1\ns_add_u32 s{T3}, s{T3}, s{S_WM}\ns_lshl_b32 s{T3}, s{T3}, 13\ns_lshl_b32 s{T2}, s{S_DT1}, 1\ns_add_u32 s{T2}, s{T2}, s{S_WN}\n"
             f"s_lshl_b32 s{T2}, s{T2}, 6\ns_add_u32 s{T3}, s{T3}, s{T2}\ns_lshl_b32 s81, s{T3}, 4")
    UB = 104
    for j in range(2):
        for s in range(2):
            bq = BQ + 4 * (2 * j + s)
            for i in range(4):
                S.append(f"v_lshlrev_b32 v{UB+2*i}, 16, v{bq+i}\nv_and_b32 v{UB+1+2*i}, v12, v{bq+i}")
            for jn in range(2):
                a = ACM + 32 * j + 16 * jn + 8 * s
                for i in range(4):
                    x0, x1 = a + 2 * i, a + 2 * i + 1
                    t0, t1 = (36, 37) if i & 1 else (34, 35)
                    S.append(rb1(x0, x0) + "\n" + rb1(x1, x1))
                    S.append(f"v_add_f32 v{x0}, v{x0}, v{UB+2*i}\nv_add_f32 v{x1}, v{x1}, v{UB+2*i+1}")
                    S.append(rb1(x0, x0) + "\n" + rb1(x1, x1))
                    S.append(f"v_mul_f32 v{t0}, v{x0}, v{x0}\nv_mul_f32 v{t1}, v{x1}, v{x1}")
                    S.append(f"v_fma_f32 v{t0}, v{t0}, s82, v8\nv_fma_f32 v{t1}, v{t1}, s82, v8")
                    S.append(f"v_mul_f32 v{t0}, v{t0}, v{x0}\nv_mul_f32 v{t1}, v{t1}, v{x1}")
                    S.append(f"v_exp_f32 v{t0}, v{t0}")
                    S.append(f"v_exp_f32 v{t1}, v{t1}")
                    S.append(f"v_add_f32 v{t0}, 1.0, v{t0}\nv_add_f32 v{t1}, 1.0, v{t1}")
                    S.append(f"v_rcp_f32 v{t0}, v{t0}")
                    S.append(f"v_rcp_f32 v{t1}, v{t1}")
                    S.append(f"v_mul_f32 v{x0}, v{x0}, v{t0}\nv_mul_f32 v{x1}, v{x1}, v{t1}\nv_cvt_pk_bf16_f32 v{a+i}, v{x0}, v{x1}")
                S.append(f"s_add_u32 s{T3}, s81, 0x{((4*j+2*s)*1024+32*jn)*16:x}\n"
                         f"buffer_store_dwordx4 v[{a}:{a+3}], v2, s[{SR_U}:{SR_U+3}], s{T3} offen sc1")
    S += flag_units(e, S_FUo, 8, 6)
    return S


def compute_pro(e):
    l = e.lab("Lcl")
    srd(e, SR_FLG, 'ws', WS_FLG, 16384)
    e(f"s_cmp_lg_u32 s2, 0\ns_cbranch_scc1 {l}\nv_mov_b32 v8, 0\nv_mov_b32 v9, 0\nv_mov_b32 v10, 0\nv_mov_b32 v11, 0\ns_lshl_b32 s{T0}, s{S_W}, 12")
    for i in range(4):
        e(f"buffer_store_dwordx4 v[8:11], v2, s[{SR_FLG}:{SR_FLG+3}], s{T0} offen offset:{i*1024} sc1")
    e(f"{l}:\nv_mov_b32 v6, v2")
    e(f"s_lshl_b32 s{T2}, s{S_PT}, 1\ns_add_u32 s{T2}, s{T2}, s{S_WN}\ns_lshl_b32 s{S_G32}, s{T2}, 5")
    e(f"s_lshl_b32 s{S_CH}, s{S_LT}, 1\ns_add_u32 s{S_CH}, s{S_CH}, s{S_WM}")
    for d, hi, sh, lo, off in ((S_FHo, S_LT, 4, S_PT, F_H), (S_FUo, S_DT1, 5, S_FT, F_U), (S_FXo, S_ST, 3, S_DT2, F_X)):
        e(f"s_lshl_b32 s{d}, s{hi}, {sh}\ns_add_u32 s{d}, s{d}, s{lo}\ns_lshl_b32 s{d}, s{d}, 2\ns_add_u32 s{d}, s{d}, s{S_W}\n"
          f"s_lshl_b32 s{d}, s{d}, 2\ns_add_u32 s{d}, s{d}, {off}")
    e(f"s_mov_b32 s{S_SLOT}, 0")
    srd(e, SR_HH, 'ws', WS_HH, 4 * MB)
    srd(e, SR_HP, 'ws', WS_HP, 8 * MB)
    srd(e, SR_U, 'ws', WS_U, 1024 * 3584 * 2)
    srd(e, SR_B1, 'b1', 0, 3584 * 2)
    srd(e, SR_ST, 'ws', WS_ST, 65536)
    for op, w in ((OPS['bu'][0], S_WM), (OPS['bu'][1], S_WN)):
        cw_base(e, op, w)
    e(f"v_bfe_u32 v38, v1, 2, 2\nv_mul_u32_u24 v38, {LROW}, v38\nv_bfe_u32 v3, v1, 1, 1\nv_lshl_add_u32 v38, v3, 3, v38\nv_lshrrev_b32 v3, 4, v1\nv_lshl_add_u32 v38, v3, 4, v38")
    e(f"v_and_b32 v3, 1, v1\nv_lshl_add_u32 v38, v3, 6, v38\ns_lshl_b32 s{T0}, s{S_W}, 7\ns_add_u32 s{T0}, s{T0}, 0x{LNL:x}\nv_add_u32 v38, s{T0}, v38")
    l = e.lab("Lcl")
    e(f"s_waitcnt vmcnt(4)\ns_cmp_eq_u32 s2, 0\ns_cbranch_scc1 {l}\ns_waitcnt vmcnt(0)\n{l}:")


def clean_mark(e):
    l = e.lab("Lcm")
    e(f"s_cmp_lg_u32 s2, 0\ns_cbranch_scc1 {l}")
    srd(e, SR_PF, 'dbg', 0, 256)
    e(f"v_mov_b32 v3, 1\nv_mov_b32 v4, 0\ns_lshl_b32 s{T0}, s{S_W}, 2\ns_waitcnt vmcnt(0)\ns_mov_b64 exec, 1\n"
      f"buffer_store_dword v3, v4, s[{SR_PF}:{SR_PF+3}], s{T0} offen sc1\ns_mov_b64 exec, -1\n{l}:")


CA, CB = 16, 20
OPS = {'bu': (Opnd('KC', 0, 24, CA, 'scan'), Opnd('KC', 16384, 25, CB, 'nat')),
       'm1': (Opnd('KS', 0, 26, CA, 'u8'), Opnd('KB', 16384, 27, CB, 'nat'))}
OPS['ch'] = (OPS['bu'][0], Opnd('KT', 16384, 28, CB, 'nat'))
OPS['uw'] = (Opnd('KB', 0, 29, CA, 'nat'), Opnd('KS', 16384, 39, CB, 'nat'))


def compute(e):
    bu, m1, ch, uw = OPS['bu'], OPS['m1'], OPS['ch'], OPS['uw']
    ts(e, 1)
    gemm_start(e, bu)
    S = []
    for it in range(4):
        S.append(f"ds_read_b64_tr_b16 v[{ACM+4*it}:{ACM+4*it+1}], v38 offset:{512*it}\nds_read_b64_tr_b16 v[{ACM+4*it+2}:{ACM+4*it+3}], v38 offset:{512*it+4*LROW}")
    S.append(f"v_lshlrev_b32 v4, 2, v1\nv_add_u32 v3, 0x{L_STAT:x}, v4\nds_read_b32 v{ACM+16}, v3")
    S.append(f"s_lshl_b32 s81, s2, 14\nv_lshlrev_b32 v3, 4, v0\ns_lshl_b32 s82, s2, 8")
    S.append(('lds',))
    for it in range(4):
        S.append(f"buffer_store_dwordx4 v[{ACM+4*it}:{ACM+4*it+3}], v3, s[{SR_HH}:{SR_HH+3}], s81 offen sc1\ns_add_u32 s81, s81, 4096")
    S.append(l0(e, f"buffer_store_dword v{ACM+16}, v4, s[{SR_ST}:{SR_ST+3}], s82 offen sc1"))
    S.append(srd_s(SR_PF, 'w1', 0, 2048 * 3584 * 2))
    S.append(pf_org())
    S.append(('note', 'st'))
    e2 = E()
    for op, w in ((m1[0], S_WM), (m1[1], S_WN), (ch[1], S_WN), (uw[0], S_WM), (uw[1], S_WN)):
        cw_base(e2, op, w)
    e2(f"v_and_b32 v3, 31, v1\nv_lshlrev_b32 v{VC8}, 3, v3\nv_add_u32 v3, s{S_G32}, v3")
    e2(f"v_lshrrev_b32 v35, 3, v3\nv_lshlrev_b32 v35, 8, v35\nv_and_b32 v3, 7, v3\nv_lshl_add_u32 v35, v3, 2, v35")
    e2(f"v_lshrrev_b32 v34, 5, v1\nv_lshlrev_b32 v34, 10, v34\nv_bfe_u32 v3, v1, 3, 1\nv_lshl_add_u32 v34, v3, 8, v34\nv_and_b32 v3, 7, v1\nv_lshl_add_u32 v34, v3, 2, v34")
    e2(f"s_lshl_b32 s81, s{S_CH}, 11\ns_mov_b32 s82, 32768")
    e2(f"s_lshl_b32 s{T0}, s{S_WN}, 10\ns_add_u32 s{T0}, s{T0}, 0x{L_CON:x}\nv_lshl_add_u32 v36, v{VC8}, 2, s{T0}")
    S += e2.L
    S.append(('bar', lambda: 5))
    S.append(f"ds_read_b128 v[{AR}:{AR+3}], v36\nds_read_b64 v[{P32R}:{P32I}], v36 offset:16")
    sd = Side(S)
    CK = 16 - NS

    def stat_loads():
        for v, o in ((MLO, 0), (MHI, 512), (RLO, 32), (RHI, 544)):
            e(f"buffer_load_dword v{v}, v34, s[{SR_ST}:{SR_ST+3}], s81 offen offset:{o}")
        e(f"buffer_load_dword v{NBR}, v35, s[{SR_ST}:{SR_ST+3}], 0 offen offset:64\nbuffer_load_dword v{NBI}, v35, s[{SR_ST}:{SR_ST+3}], s82 offen offset:64")

    pre = {ARR: [lambda: e(f"s_waitcnt vmcnt({sum(1 for b in PFS if b < ARR)})")]}
    post = {CK: [stat_loads]}
    post1 = {}
    for b in PFS:
        (post if b < 15 else post1).setdefault(b if b < 15 else max(b - 16, 0), []).append(lambda: e(pf_ld(112, MB)))
    if TSL == "bu":
        for n, k in enumerate((1, 4, 7, 10, 13)):
            post.setdefault(k, []).append(lambda n=n: ts(e, 2 + n, "bu"))
    if TSL == "b2":
        for n, k in enumerate((6, 7, 8, 9, 10, 11, 13, 14)):
            post.setdefault(k, []).append(lambda n=n: ts(e, 2 + n, "b2"))
    for k in range(15):
        assert k < PF0 or 'st' in sd.notes
        step(e, bu, bu, ACB, sd, k == 0, pre.get(k), post.get(k))
    assert not sd.q
    spare, join = e.lab("Lcs"), e.lab("Lcj")
    e(f"s_cmp_ge_u32 s{S_IDX}, 28\ns_cbranch_scc1 {spare}")
    step(e, bu, m1, ACB)
    ts(e, 2)
    sd = Side([])
    sd.q = side_scan(e, lambda: sd.notes['pub'] + GA + 4)
    post = post1
    if TSL == "m1":
        for n, k in enumerate((3, 7, 11, 15, 19, 23)):
            post.setdefault(k, []).append(lambda n=n: ts(e, 3 + n, "m1"))
        ts(e, 2, "m1")
    nw = gemm(e, m1, ch, ACM, 32, sd, post=post, name="m1", rpost=[lambda: e(pf_ld(30, 896 * 1024))] if PFS and "now2" not in OPT else None)
    NW2[0] = nw if PFS and "now2" not in OPT else 0
    ts(e, 9, "m1")
    PUB = 16 + sd.notes['pub']
    assert max(PFS, default=0) < PUB + GA + 3
    ts(e, 3)
    gemm(e, ch, uw, ACB, 16, Side(side_gelu(e), BUDG), name="ch")
    e(f"s_branch {join}")
    e(f"{spare}:")
    step(e, bu, None, ACB)
    ts(e, 2)
    Side(side_scan(e, None, True)).flush(e)
    e("s_barrier")
    ts(e, 3)
    gemm_start(e, ch)
    gemm(e, ch, uw, ACB, 16, None, name="ch-spare")
    e(f"{join}:")
    ts(e, 4)
    rolled(e, uw, ACB, f"s_cmp_eq_u32 s{S_KH}, 0\ns_cselect_b32 s{S_CNT}, {KO-1}, {55-KO}")
    step(e, uw, None, ACB)
    ts(e, 5)
    snd = e.lab("Lcx")
    e(f"s_cmp_eq_u32 s{S_KH}, 1\ns_cbranch_scc1 {snd}")
    e(f"s_mul_i32 s{T0}, s{S_W}, {64*272}\nv_and_b32 v4, 31, v1\nv_mul_u32_u24 v4, 272, v4\nv_lshrrev_b32 v3, 5, v1\nv_lshl_add_u32 v4, v3, 7, v4\nv_add_u32 v4, s{T0}, v4")
    e("s_nop 7\ns_nop 3")
    for j in range(2):
        for jn in range(2):
            for q in range(4):
                a = ACB + 32 * j + 16 * jn + 4 * q
                e(f"ds_write_b128 v4, v[{a}:{a+3}] offset:{jn*32*272+j*64+q*16}")
    e("s_waitcnt lgkmcnt(0)\ns_barrier")
    ts(e, 6)
    ts_store(e)
    e("s_endpgm")
    e(f"{snd}:")
    srd(e, 56, 'ws', WS_XCH, 4 * MB)
    e(f"s_sub_u32 s{T0}, s{S_FXo}, {F_X}\ns_lshl_b32 s{T0}, s{T0}, 11\ns_add_u32 s{T1}, s{T0}, 4096\nv_lshlrev_b32 v2, 4, v1\ns_nop 7\ns_nop 3")
    for blk in range(8):
        a = ACB + 8 * blk
        for i in range(4):
            e(f"v_cvt_pk_f16_f32 v{a+i}, v{a+2*i}, v{a+2*i+1}")
        e(f"buffer_store_dwordx4 v[{a}:{a+3}], v2, s[56:59], s{T1 if blk >= 4 else T0} offen offset:{(blk&3)*1024} sc1")
    e(f"v_mov_b32 v36, 0\nv_mov_b32 v3, 1\ns_waitcnt vmcnt(0)\ns_mov_b64 exec, 1\nbuffer_store_dword v3, v36, s[{SR_FLG}:{SR_FLG+3}], s{S_FXo} offen sc1\ns_mov_b64 exec, -1")
    ts(e, 6)
    ts_store(e)
    return PUB


def gen(e):
    name = NAME + "_kernel"
    e(f".globl {name}\n.p2align 8\n.type {name},@function\n{name}:")
    e("s_cmp_ge_u32 s2, 256\ns_cbranch_scc1 L_end")
    e("s_load_dwordx16 s[4:19], s[0:1], 0\ns_load_dwordx16 s[20:35], s[0:1], 64\ns_load_dwordx2 s[36:37], s[0:1], 128")
    ts(e, 14)
    ts(e, 0)
    e(f"v_lshrrev_b32 v2, 6, v0\nv_and_b32 v1, 63, v0\nv_readfirstlane_b32 s{S_WAVE}, v2\nv_lshlrev_b32 v2, 4, v1\nv_mov_b32 v4, 0")
    e(f"s_lshl_b32 s{T0}, s2, 3\ns_add_u32 s{T0}, s{T0}, s{S_WAVE}\ns_lshl_b32 s{T0}, s{T0}, 11\ns_and_b32 s{T1}, s{T0}, 0x{2*MB-1:x}\ns_lshr_b32 s{T2}, s{T0}, 10")
    e(f"s_mov_b32 s58, 0x{4*MB:x}\ns_mov_b32 s59, 0x20000\ns_mov_b32 s62, 0x{2*MB:x}\ns_mov_b32 s63, 0x20000\ns_mov_b32 s66, 4096\ns_mov_b32 s67, 0x20000")
    e("s_cmp_lt_u32 s2, 128\ns_waitcnt lgkmcnt(0)")
    e(f"s_mov_b32 s56, s{P['x']}\ns_mov_b32 s57, s{P['x']+1}")
    e(f"buffer_load_dwordx4 v[{LX}:{LX+3}], v2, s[56:59], s{T0} offen\nbuffer_load_dwordx4 v[{LX+4}:{LX+7}], v2, s[56:59], s{T0} offen offset:1024")
    e(f"s_cselect_b32 s60, s{P['bre']}, s{P['bim']}\ns_cselect_b32 s61, s{P['bre']+1}, s{P['bim']+1}\ns_mov_b32 s64, s{P['b2']}\ns_mov_b32 s65, s{P['b2']+1}")
    e(f"buffer_load_dwordx4 v[{LBQ}:{LBQ+3}], v2, s[60:63], s{T1} offen\nbuffer_load_dwordx4 v[{LBQ+4}:{LBQ+7}], v2, s[60:63], s{T1} offen offset:1024")
    e(f"buffer_load_ushort v{LS_+3}, v4, s[64:67], s{T2} offen")
    X, I = S_XCD, S_IDX
    e(f"s_and_b32 s{S_W}, s{S_WAVE}, 3\ns_lshr_b32 s{S_WM}, s{S_W}, 1\ns_and_b32 s{S_WN}, s{S_W}, 1")
    e(f"s_and_b32 s{X}, s2, 7\ns_lshr_b32 s{I}, s2, 3")
    e(f"s_and_b32 s{S_LT}, s{X}, 3\ns_lshl_b32 s{S_LT}, s{S_LT}, 2\ns_and_b32 s{T0}, s{I}, 3\ns_add_u32 s{S_LT}, s{S_LT}, s{T0}")
    e(f"s_lshr_b32 s{S_PT}, s{X}, 2\ns_lshl_b32 s{S_PT}, s{S_PT}, 3\ns_lshr_b32 s{T0}, s{I}, 2\ns_add_u32 s{S_PT}, s{S_PT}, s{T0}")
    e(f"s_and_b32 s{S_DT1}, s{X}, 1\ns_lshl_b32 s{S_DT1}, s{S_DT1}, 2\ns_and_b32 s{T0}, s{I}, 3\ns_add_u32 s{S_DT1}, s{S_DT1}, s{T0}")
    e(f"s_lshr_b32 s{S_FT}, s{X}, 1\ns_mul_i32 s{S_FT}, s{S_FT}, 7\ns_lshr_b32 s{T0}, s{I}, 2\ns_add_u32 s{S_FT}, s{S_FT}, s{T0}")
    e(f"s_and_b32 s{S_KH}, s{X}, 1")
    e(f"s_bfe_u32 s{S_ST}, s{X}, 0x10001\ns_lshl_b32 s{S_ST}, s{S_ST}, 3\ns_and_b32 s{T0}, s{I}, 7\ns_add_u32 s{S_ST}, s{S_ST}, s{T0}")
    e(f"s_lshr_b32 s{S_DT2}, s{X}, 2\ns_lshl_b32 s{S_DT2}, s{S_DT2}, 2\ns_lshr_b32 s{T0}, s{I}, 3\ns_add_u32 s{S_DT2}, s{S_DT2}, s{T0}")
    e(f"s_cmp_lt_u32 s{S_WAVE}, 4\ns_cbranch_scc1 L_compute")
    ld = loader_pro(e)
    ec = E()
    compute_pro(ec)
    ln_row(ec)
    ln_tail(ec)
    clean_mark(ec)
    PUB = compute(ec)
    print("PUB", PUB, file=sys.stderr)
    loader(e, ld, PUB)
    e(".p2align 6\nL_compute:")
    e.L += ec.L
    e("L_end:\ns_endpgm")
    e(f""".section .rodata,"a"
.p2align 6
.amdhsa_kernel {name}
  .amdhsa_next_free_vgpr 256
  .amdhsa_next_free_sgpr 102
  .amdhsa_accum_offset 256
  .amdhsa_group_segment_fixed_size 0
  .amdhsa_kernarg_size 136
  .amdhsa_user_sgpr_count 2
  .amdhsa_user_sgpr_kernarg_segment_ptr 1
  .amdhsa_system_sgpr_workgroup_id_x 1
  .amdhsa_float_denorm_mode_32 3
.end_amdhsa_kernel""")


def main(path):
    ref = open(f"cdna_kernels/{NAME}.s.ref").read().splitlines()
    hdr = [l for l in ref if l.startswith(";") and "@launch" not in l and "Override" not in l and "grid=ceil" not in l][:18]
    e = E()
    gen(e)
    out = "\n".join(hdr) + "\n"
    if "list" in OPT:
        out += f"; @launch kernel={NAME}_kernel grid=(256,1,1) block=(512,1,1) lds={LDS_SIZE}\n"
    else:
        out += f"; @launch grid=(256,1,1) block=(512,1,1) lds={LDS_SIZE}\n"
    out += '.amdgcn_target "amdgcn-amd-amdhsa--gfx950"\n.text\n'
    out += "\n".join(l for l in e.L if l) + "\n"
    open(path, "w").write(out)


if __name__ == "__main__":
    main(sys.argv[1] if len(sys.argv) > 1 else f"cdna_kernels/{NAME}.s")
```

```python
import sys, struct, math, os

NAME = "parallel_sum__ssm_conv_s5__mixer_token_mlp__prompt"
MB = 1 << 20
WS_HH, WS_U, WS_HP = 4 * MB, 8 * MB, 16 * MB
WS_ST = 24 * MB
WS_AGG = 24 * MB + 131072
WS_FLG = 25 * MB
F_H, F_U, F_X = 4096, 8192, 12288
WS_XCH = 32 * MB
WS_TS = 48 * MB


def env(n, d):
    return type(d)(os.environ.get(n, d))


NS = 4
STG = 32768
KO = env("KO", 32)
RCT = env("RCT", 6)
BUD = env("BUD", 32)
BUDG = env("BUDG", 48)
OPT = set(os.environ.get("OPT", "").split(","))
SLP = env("SLP", 8)
TMO = 0x8000
ARR = env("ARR", 6)
GA = env("GA", 6)
SKS = env("SKS", 6)
PF0, PFD, PFW = env("PF0", 3), env("PFD", 16), env("PFW", 24)
ALD = env("ALD", 2)
SLA = env("SLA", 16)
G0 = env("G0", 9)
TLW, TLP = env("TLW", 0), env("TLP", 1)
NB0, NB1, NB2 = env("NB0", 0), env("NB1", 5), env("NB2", 0)
BUR = [tuple(int(y) for y in x.split(":")) for x in env("BUR", "").split(",") if x]
NCP = env("NCP", 3)
DSM = env("DSM", 2)
PFS = [PF0 + i * PFD // 10 for i in range(14)] if "cpf" in OPT else []
SG, NP1, NP2 = env("SG", 128), env("NP1", 4), env("NP2", 0)
SP0, SP1, SW1, SW2 = env("SP0", 1), env("SP1", 18), env("SW1", 0), env("SW2", 0)
NSB, NCW, W2H = env("NSB", 0), env("NCW", 0), env("W2H", 2)
PFM, OUTM = env("PFM", ""), env("OUTM", "nt")
BL0 = env("BL0", 17)
TSL = env("TSL", "")

LNL = NS * STG
LROW = 2176
L_STAT = LNL + 8 * LROW
L_CON = L_STAT + 256
L_AGL = L_CON + 2048
L_CAR = L_AGL + 1024
LDS_SIZE = L_CAR + 1024

P = dict(x=4, lre=6, lim=8, bre=10, bim=12, cre=14, cim=16, ldt=18, dsk=20, w1=24, b1=26, w2=28, b2=30,
         out=32, dbg=34, ws=36)
S_W = 3
S_WAVE, S_XCD, S_IDX = 38, 39, 40
S_LT, S_PT, S_DT1, S_FT, S_KH, S_ST, S_DT2 = 41, 42, 43, 44, 45, 46, 47
T0, T1, T2, T3 = 48, 49, 50, 51
S_CNT, S_SLOT, S_A, S_B = 52, 53, 54, 55
S_WM, S_WN = 22, 23
ACB, ACM = 128, 192
DPP = "row_mask:0xf bank_mask:0xf"


def f2u(x):
    return struct.unpack('<I', struct.pack('<f', x))[0]


class E:
    n = 0

    def __init__(s):
        s.L = []

    def __call__(s, t):
        s.L.append(t)

    def lab(s, p="L"):
        E.n += 1
        return f"{p}_{E.n}"


def srd_s(sd, ptr, off, size):
    lo = P[ptr]
    if off:
        t = f"s_add_u32 s{sd}, s{lo}, 0x{off:x}\ns_addc_u32 s{sd+1}, s{lo+1}, 0\n"
    else:
        t = f"s_mov_b32 s{sd}, s{lo}\ns_mov_b32 s{sd+1}, s{lo+1}\n"
    return t + f"s_mov_b32 s{sd+2}, 0x{size:x}\ns_mov_b32 s{sd+3}, 0x20000"


def srd(e, sd, ptr, off, size):
    e(srd_s(sd, ptr, off, size))


VTS = 5
TSN = {}


def ts(e, n, lab=""):
    if "ts" in OPT and lab == (TSL if lab else "") and not (TSL and not lab and 2 <= n < 10):
        e(f"{'s_memrealtime' if 'tr' in OPT or n >= 14 else 's_memtime'} s[100:101]\ns_waitcnt lgkmcnt(0)\nv_writelane_b32 v{VTS}, s100, {n}")


def ts_store(e):
    if "ts" in OPT:
        e("s_waitcnt vmcnt(0)")
        ts(e, 15)
        srd(e, 60, 'ws', WS_TS, MB)
        e(f"s_lshl_b32 s{T0}, s2, 3\ns_add_u32 s{T0}, s{T0}, s{S_WAVE}\ns_lshl_b32 s{T0}, s{T0}, 6\nv_lshlrev_b32 v2, 2, v1\ns_mov_b64 exec, 0xffff\n"
          f"buffer_store_dword v{VTS}, v2, s[60:63], s{T0} offen")


def rb1(d, v):
    return f"v_cvt_pk_bf16_f32 v{d}, 0, v{v}"


def zipemit(e, streams):
    ls = [("\n".join(s)).split("\n") for s in streams]
    n = max(len(x) for x in ls)
    for i in range(n):
        for x in ls:
            if i < len(x):
                e(x[i])


LX, LBQ, LS_, LF = 64, 72, 80, 96


def ln_row(e):
    S, Q, BS, B2, Ta, Tb, Tc, M1, R1, NM = range(LS_, LS_ + 10)
    ONE, LO, HI = T1, T2, T3
    e(f"s_mov_b32 s{ONE}, 0x3f803f80\ns_mov_b32 s{LO}, 0x3f80\ns_mov_b32 s{HI}, 0x3f800000")

    def allreduce(v, t):
        return [f"v_add_f32 v{v}, v{v}, v{v} quad_perm:[1,0,3,2] {DPP}",
                f"v_add_f32 v{v}, v{v}, v{v} quad_perm:[2,3,0,1] {DPP}",
                f"v_add_f32 v{v}, v{v}, v{v} row_half_mirror {DPP}",
                f"v_add_f32 v{v}, v{v}, v{v} row_mirror {DPP}",
                f"v_mov_b32 v{t}, v{v}", f"v_permlane16_swap_b32 v{t}, v{v}", f"v_add_f32 v{v}, v{v}, v{t}",
                f"v_mov_b32 v{t}, v{v}", f"v_permlane32_swap_b32 v{t}, v{v}", f"v_add_f32 v{v}, v{v}, v{t}"]

    for ps in range(2):
        e(f"v_dot2_f32_bf16 v{S}, v{LX}, s{ONE}, 0\nv_dot2_f32_bf16 v{Q}, v{LX}, v{LX}, 0")
        if ps == 0:
            e(f"v_dot2_f32_bf16 v{BS}, v{LBQ}, s{ONE}, 0")
        for i in range(1, 8):
            e(f"v_dot2_f32_bf16 v{S}, v{LX+i}, s{ONE}, v{S}\nv_dot2_f32_bf16 v{Q}, v{LX+i}, v{LX+i}, v{Q}")
            if ps == 0:
                e(f"v_dot2_f32_bf16 v{BS}, v{LBQ+i}, s{ONE}, v{BS}")
        e("s_nop 3")
        zipemit(e, [allreduce(S, Ta), allreduce(Q, Tb), allreduce(BS, Tc) if ps == 0 else ["s_nop 0"] * 10])
        e(f"v_mul_f32 v{S}, 0x{f2u(1/1024):x}, v{S}\nv_mul_f32 v{Q}, 0x{f2u(1/1024):x}, v{Q}\nv_fma_f32 v{Q}, -v{S}, v{S}, v{Q}\nv_max_f32 v{Q}, 0, v{Q}")
        e(rb1(Q, Q) + f"\nv_add_f32 v{Q}, 0x{f2u(1e-5):x}, v{Q}\n" + rb1(Q, Q) + f"\nv_sqrt_f32 v{Q}, v{Q}\n" + rb1(S, S))
        e(f"v_xor_b32 v{NM}, 0x80000000, v{S}\n" + rb1(Q, Q) + f"\nv_rcp_f32 v{Q}, v{Q}")
        for i in range(8):
            e(f"v_dot2_f32_bf16 v{LF+2*i}, v{LX+i}, s{LO}, v{NM}\nv_dot2_f32_bf16 v{LF+2*i+1}, v{LX+i}, s{HI}, v{NM}")
        if ps == 0:
            e(f"v_mov_b32 v{M1}, v{S}\nv_mov_b32 v{R1}, v{Q}")
        e("s_nop 1")
        for i in range(16):
            e(rb1(LF + i, LF + i))
        for i in range(8):
            e(f"v_pk_mul_f32 v[{LF+2*i}:{LF+2*i+1}], v[{LF+2*i}:{LF+2*i+1}], v[{S}:{Q}] op_sel:[0,1] op_sel_hi:[1,1]")
        for i in range(8):
            e(f"v_cvt_pk_bf16_f32 v{LX+i}, v{LF+2*i}, v{LF+2*i+1}")


def ln_tail(e):
    S, Q, BS, B2, Ta, Tb, Tc, M1, R1, NM = range(LS_, LS_ + 10)
    e(f"s_mul_i32 s{T1}, s{S_WAVE}, {LROW}\ns_add_u32 s{T1}, s{T1}, 0x{LNL:x}\nv_add_u32 v3, s{T1}, v2")
    e(f"ds_write_b128 v3, v[{LX}:{LX+3}]\nds_write_b128 v3, v[{LX+4}:{LX+7}] offset:1024")
    e(f"v_lshrrev_b32 v{Ta}, 16, v{M1}\nv_lshl_or_b32 v{Ta}, v{B2}, 16, v{Ta}")
    for i, v in ((1, R1), (2, BS), (3, Ta), (4, R1)):
        e(f"v_cmp_eq_u32 vcc, {i}, v1\nv_cndmask_b32 v{M1}, v{M1}, v{v}, vcc")
    e(f"s_lshl_b32 s{T1}, s{S_WAVE}, 2\ns_add_u32 s{T1}, s{T1}, 0x{L_STAT:x}\nv_lshl_add_u32 v3, v1, 5, s{T1}")
    e(f"s_lshl_b32 s{T2}, s{S_WAVE}, 3\ns_add_u32 s{T2}, s{T2}, 0x{L_STAT+128-12:x}\nv_lshl_add_u32 v4, v1, 2, s{T2}")
    e(f"v_cmp_lt_u32 vcc, 2, v1\nv_cndmask_b32 v3, v3, v4, vcc\ns_mov_b64 exec, 31\nds_write_b32 v3, v{M1}\ns_mov_b64 exec, -1")


S_M0B, S_M1, S_MSK = 0, 1, 26
S_RO = 27
SL_FLG, SL_DBG, SL_AGG = 88, 92, 96
P64R, P64I, P128R, P128I, PKR, PKI = 44, 45, 46, 47, 48, 49
VA0, LVC8, VSM, VSO, VXS, VXO = 50, 52, 53, 54, 55, 56
LB, LR, LWG, LPT, LDS_, LXX = 64, 128, 192, 208, 240, 244


def ld_voff_kc(e, vd, s_row0, ld, bcat=False, scan=False, t0=57, t1=3, t2=4):
    e(f"v_lshrrev_b32 v{t0}, 3, v1\nv_and_b32 v{t1}, 7, v1\nv_lshrrev_b32 v{t2}, 4, v1\nv_xor_b32 v{t1}, v{t1}, v{t2}")
    if bcat:
        e(f"s_lshr_b32 s{T0}, s{S_W}, 1\ns_lshl_b32 s{T0}, s{T0}, 5\ns_add_u32 s{T0}, s{T0}, s{s_row0}")
    else:
        e(f"s_lshl_b32 s{T0}, s{S_W}, 5\ns_add_u32 s{T0}, s{T0}, s{s_row0}")
    e(f"v_add_u32 v{t0}, s{T0}, v{t0}")
    if scan:
        e(f"s_and_b32 s{T0}, s{S_W}, 1\ns_lshl_b32 s{T0}, s{T0}, 2\nv_xor_b32 v{t1}, s{T0}, v{t1}")
    assert ld == 2048
    e(f"v_lshlrev_b32 v{t0}, 11, v{t0}\nv_lshl_add_u32 v{vd}, v{t1}, 4, v{t0}")
    if not scan:
        e(f"v_xor_b32 v{t1}, 4, v{t1}")
    e(f"v_lshl_add_u32 v{t0}, v{t1}, 4, v{t0}")
    for q in range(1, 4):
        e(f"v_add_u32 v{vd+q}, 0x{q*(8*2048-1024):x}, v{t0 if q & 1 else vd}")


def ld_voff_kb(e, vd, s_row0, R, t0=57):
    e(f"v_add_u32 v{t0}, s{s_row0}, v1\nv_lshlrev_b32 v{t0}, 4, v{t0}\ns_mul_i32 s{T0}, s{S_W}, {2*R*16}\nv_add_u32 v{t0}, s{T0}, v{t0}")
    for q in range(4):
        e(f"v_add_u32 v{vd+q}, 0x{(q>>1)*R*16 + (q&1)*1024 + 4096 - q*1024:x}, v{t0}")


def ld_voff_kt(e, vd, s_tile, t0=57):
    e(f"s_lshl_b32 s{T0}, s{s_tile}, 14\ns_lshl_b32 s{T1}, s{S_W}, 12\ns_add_u32 s{T0}, s{T0}, s{T1}")
    for q in range(4):
        e(f"v_xor_b32 v{t0}, {q<<2}, v1\nv_lshlrev_b32 v{t0}, 4, v{t0}\nv_add_u32 v{vd+q}, s{T0}, v{t0}")


def ld_voff_ks(e, vd, s_n0, ld, t0=57, t1=3, t2=4):
    e(f"v_lshrrev_b32 v{t0}, 4, v1\nv_and_b32 v{t1}, 15, v1\nv_lshlrev_b32 v{t2}, 2, v{t0}\nv_xor_b32 v{t1}, v{t1}, v{t2}")
    e(f"s_lshl_b32 s{T0}, s{S_W}, 4\nv_add_u32 v{t0}, s{T0}, v{t0}")
    e(f"s_lshl_b32 s{T1}, s{s_n0}, 1\nv_lshlrev_b32 v{t1}, 4, v{t1}\nv_add_u32 v{t1}, s{T1}, v{t1}")
    e(f"v_mul_u32_u24 v{t0}, {ld}, v{t0}\nv_add_u32 v{vd}, v{t0}, v{t1}")
    for q in range(1, 4):
        e(f"v_add_u32 v{vd+q}, 0x{q*(4*ld-1024):x}, v{vd}")


class Seg:
    def __init__(s, va, sa, dA, dB, init):
        s.va, s.sa, s.dA, s.dB, s.init = va, sa, dA, dB, init


class Ld:
    def __init__(s, e):
        s.e = e
        s.ops = 0
        s.end = {}
        s.lg = True

    def issue(s, st, sg, j, fill=()):
        e = s.e
        fill = [l for f in fill for l in f.split("\n")]
        per = (len(fill) + 7) // 8

        def fl(i):
            for l in fill[i * per:(i + 1) * per]:
                e(l)
                if l.startswith("buffer_"):
                    s.ops += 1
                if l.startswith("ds_write"):
                    s.lg = True
        if j == 0:
            e(sg.init)
        e(f"s_mov_b32 m0, s{S_SLOT}\ns_add_u32 s{S_M1}, s{S_SLOT}, 16384")
        for h in range(2):
            if h:
                e(f"s_mov_b32 m0, s{S_M1}\ns_nop 0")
            for q in range(4):
                e(f"buffer_load_dwordx4 v{sg.va+4*h+q}, s[{sg.sa+4*h}:{sg.sa+4*h+3}], s{S_B if h else S_A} offen offset:{q*1024} lds")
                s.ops += 1
                s.end[st] = s.ops
                fl(4 * h + q)
        e(f"s_add_u32 s{S_A}, s{S_A}, 0x{sg.dA:x}\ns_add_u32 s{S_B}, s{S_B}, 0x{sg.dB:x}")
        e(f"s_add_u32 s{S_SLOT}, s{S_SLOT}, {STG}\ns_cmp_ge_u32 s{S_SLOT}, {NS*STG}\ns_cselect_b32 s{S_SLOT}, s{S_M0B}, s{S_SLOT}")

    def extra(s, code):
        s.e(code)
        s.ops += sum(1 for l in code.split("\n") if l.startswith("buffer_"))
        s.lg |= "ds_write" in code

    def mark(s, name):
        s.end[name] = s.ops

    def cnt(s, name):
        return min(63, s.ops - s.end[name])

    def bar(s, st):
        s.e(f"s_waitcnt vmcnt({s.cnt(st)}){' lgkmcnt(0)' if s.lg else ''}\ns_barrier")
        s.lg = False

    def run(s, stages, b0, b1, H):
        L = s.e.L
        first, its = len(L), []
        for b in range(b0, b1):
            its.append(len(L))
            for f in H.get(('chk', b), ()):
                f(s)
            s.bar(b)
            for f in H.get(('pre', b), ()):
                f(s)
            n = b + NS - 1
            fill = H.get(('fill', b), ())
            if n < len(stages):
                s.issue(n, *stages[n], fill=fill)
            else:
                for f in fill:
                    s.extra(f)
            for f in H.get(('post', b), ()):
                f(s)
        its.append(len(L))
        T = ["\n".join(L[its[i]:its[i + 1]]) for i in range(len(its) - 1)]
        del L[first:]
        i = 0
        while i < len(T):
            j = i
            while j < len(T) and T[j] == T[i]:
                j += 1
            if j - i >= 3 and "noroll" not in OPT and T[i].count("\n") > 4:
                l = s.e.lab("Lr")
                L.append(f"s_mov_b32 s7, {j-i}\n{l}:\n{T[i]}\ns_sub_u32 s7, s7, 1\ns_cmp_lg_u32 s7, 0\ns_cbranch_scc1 {l}")
            else:
                L.extend(T[i:j])
            i = j

    def copy(s):
        c = Ld(s.e)
        c.ops, c.end, c.lg = s.ops, dict(s.end), s.lg
        return c


def hook(H, kind, b, f):
    H.setdefault((kind, b), []).append(f)


def l0(e, body):
    l = e.lab("Lw")
    return f"s_cmp_lg_u32 s{S_W}, 0\ns_cbranch_scc1 {l}\n{body}\n{l}:"


def m0only(e, body):
    l = e.lab("Lm")
    return f"s_cmp_lg_u32 s{S_WM}, 0\ns_cbranch_scc1 {l}\n{body}\n{l}:"


def exm(n):
    return f"s_mov_b64 exec, {'-1' if n >= 64 else hex((1 << n) - 1)}" if n != 32 else "s_mov_b32 exec_lo, -1\ns_mov_b32 exec_hi, 0"


def smp(sr, soff, imm=0):
    return f"buffer_load_dword v{VSM}, v{VSO}, s[{sr}:{sr+3}], {soff} offen offset:{imm} sc1"


def add_check(H, e, b, sr, soff, imm, nl, val, lead=2, slp=None):
    nm = e.lab("smp")

    def sample(ld):
        ld.e(l0(e, f"{exm(nl)}\n{smp(sr, soff, imm)}\ns_mov_b64 exec, -1"))
        ld.mark(nm)

    def check(ld):
        ld.e(l0(e, poll(e, sr, soff, imm, nl, val, ld.cnt(nm), slp)))
    hook(H, 'pre', b - lead, sample)
    hook(H, 'chk', b, check)


def poll(e, sr, soff, imm, nl, val, cnt, slp=None):
    lp, ok = e.lab("Lcp"), e.lab("Lco")
    return (f"{exm(nl)}\ns_mov_b32 s{T2}, {TMO}\ns_waitcnt vmcnt({cnt})\n{lp}:\nv_cmp_ne_u32 vcc, {val}, v{VSM}\ns_nop 1\ns_cbranch_vccz {ok}\n"
            f"s_sleep {slp or SLP}\n{smp(sr, soff, imm)}\ns_waitcnt vmcnt(0)\ns_sub_u32 s{T2}, s{T2}, 1\ns_cbranch_scc0 {lp}\n{ok}:\ns_mov_b64 exec, -1")


def cmul_sq(re, im, t):
    return f"v_mul_f32 v{t}, v{re}, v{im}\nv_mul_f32 v{re}, v{re}, v{re}\nv_fma_f32 v{re}, -v{im}, v{im}, v{re}\nv_add_f32 v{im}, v{t}, v{t}"


def cfma(dr, di, pr, pi, xr, xi, ar, ai):
    return (f"v_fma_f32 v{dr}, v{pr}, v{xr}, v{ar}\nv_fma_f32 v{di}, v{pr}, v{xi}, v{ai}\n"
            f"v_fma_f32 v{dr}, -v{pi}, v{xi}, v{dr}\nv_fma_f32 v{di}, v{pi}, v{xr}, v{di}")


def consts():
    AR_, AI_, CR_, CI_, Q32R, Q32I = 192, 193, 194, 195, 196, 197
    L2E = f"0x{f2u(math.log2(math.e)):x}"
    a = ["v_lshlrev_b32 v58, 16, v58\nv_lshlrev_b32 v59, 16, v59\nv_lshlrev_b32 v60, 16, v60",
         f"v_mul_f32 v60, {L2E}, v60\nv_exp_f32 v60, v60\ns_nop 0", rb1(60, 60),
         "v_mul_f32 v61, v60, v58\nv_mul_f32 v62, v60, v59",
         f"v_mul_f32 v61, {L2E}, v61\nv_exp_f32 v61, v61",
         f"v_mul_f32 v62, 0x{f2u(1/(2*math.pi)):x}, v62\nv_rndne_f32 v63, v62\nv_sub_f32 v62, v62, v63",
         "v_cos_f32 v63, v62\nv_sin_f32 v60, v62\ns_nop 0",
         f"v_mul_f32 v{AR_}, v61, v63\nv_mul_f32 v{AI_}, v61, v60\nv_add_f32 v63, -1.0, v{AR_}",
         "v_mul_f32 v60, v58, v58\nv_fmac_f32 v60, v59, v59\nv_rcp_f32 v60, v60",
         f"v_mul_f32 v{CR_}, v63, v58\nv_fmac_f32 v{CR_}, v{AI_}, v59",
         f"v_mul_f32 v{CI_}, v{AI_}, v58\nv_fma_f32 v{CI_}, -v63, v59, v{CI_}",
         "v_add_f32 v60, v60, v60",
         f"v_mul_f32 v{CR_}, v{CR_}, v60\nv_mul_f32 v{CI_}, v{CI_}, v60"]
    b = [f"v_mov_b32 v{Q32R}, v{AR_}\nv_mov_b32 v{Q32I}, v{AI_}"] + [cmul_sq(Q32R, Q32I, 58)] * 5
    b += [f"s_lshl_b32 s{T0}, s{S_WN}, 10\ns_add_u32 s{T0}, s{T0}, 0x{L_CON:x}\nv_lshl_add_u32 v59, v{LVC8}, 2, s{T0}",
          f"ds_write_b128 v59, v[{AR_}:{AR_+3}]\nds_write_b64 v59, v[{Q32R}:{Q32I}] offset:16"]
    c = [f"v_mov_b32 v{P64R}, v{Q32R}\nv_mov_b32 v{P64I}, v{Q32I}", cmul_sq(P64R, P64I, 58),
         f"v_mov_b32 v{P128R}, v{P64R}\nv_mov_b32 v{P128I}, v{P64I}", cmul_sq(P128R, P128I, 58),
         f"v_mov_b32 v{PKR}, v{P128R}\nv_mov_b32 v{PKI}, v{P128I}"] + [cmul_sq(PKR, PKI, 58)] * 3
    return a, b, c


def agg_off():
    return f"s_lshl_b32 s{T3}, s{S_PT}, 1\ns_add_u32 s{T3}, s{T3}, s{S_WN}\ns_lshl_b32 s{T3}, s{T3}, 12"


def agg_read():
    return (f"s_lshl_b32 s{T0}, s{S_WN}, 8\ns_add_u32 s{T0}, s{T0}, 0x{L_AGL:x}\nv_add_u32 v57, s{T0}, v{LVC8}\n"
            f"ds_read_b64 v[{VA0}:{VA0+1}], v57\nds_read_b64 v[58:59], v57 offset:512")


def agg_store():
    return ("s_waitcnt lgkmcnt(0)\n" + cfma(60, 61, P64R, P64I, VA0, VA0 + 1, 58, 59) + "\n" + agg_off() +
            f"\ns_lshl_b32 s{T0}, s{S_LT}, 8\ns_add_u32 s{T3}, s{T3}, s{T0}\n"
            f"buffer_store_dwordx2 v[60:61], v{LVC8}, s[{SL_AGG}:{SL_AGG+3}], s{T3} offen sc1")


def agg_gather():
    t = (f"v_lshrrev_b32 v57, 5, v1\nv_lshlrev_b32 v57, 3, v57\ns_sub_u32 s{T0}, s{S_LT}, 1\nv_sub_u32 v57, s{T0}, v57\n"
         f"v_lshl_add_u32 v57, v57, 8, v{LVC8}\n" + agg_off())
    for i in range(8):
        t += f"\nbuffer_load_dwordx2 v[{LWG+2*i}:{LWG+2*i+1}], v57, s[{SL_AGG}:{SL_AGG+3}], s{T3} offen sc1"
        if i < 7:
            t += "\nv_subrev_u32 v57, 256, v57"
    return t


def agg_check(e, slp=None):
    lp, ok = e.lab("Lgp"), e.lab("Lgo")
    t = f"s_mov_b32 s{T2}, {TMO}\n{lp}:\nv_max_u32 v57, v{LWG}, v{LWG+1}\n"
    for i in range(1, 8):
        t += f"v_max3_u32 v57, v57, v{LWG+2*i}, v{LWG+2*i+1}\n"
    t += (f"v_cmp_eq_u32 vcc, -1, v57\ns_nop 1\ns_cbranch_vccz {ok}\ns_sleep {slp or SLP}\n{agg_gather()}\ns_waitcnt vmcnt(0)\n"
          f"s_sub_u32 s{T2}, s{T2}, 1\ns_cbranch_scc0 {lp}\n{ok}:")
    return t


def agg_horner():
    L = []
    c, t = LWG + 14, 58
    for i in range(6, -1, -1):
        L.append(cfma(t, t + 1, P128R, P128I, c, c + 1, LWG + 2 * i, LWG + 2 * i + 1))
        c, t = t, (60 if t == 58 else 58)
    L.append(f"v_mov_b32 v{t}, v{c}\nv_mov_b32 v{t+1}, v{c+1}\ns_nop 1\nv_permlane32_swap_b32 v{t}, v{c}\nv_permlane32_swap_b32 v{t+1}, v{c+1}\ns_nop 1")
    L.append(cfma(62, 63, PKR, PKI, c, c + 1, t, t + 1))
    L.append(cfma(c, c + 1, P64R, P64I, 62, 63, VA0, VA0 + 1))
    L.append(f"s_mul_i32 s{T0}, s{S_WM}, {L_CAR-LNL}\ns_sub_u32 s{T0}, 0x{L_CAR:x}, s{T0}\ns_lshl_b32 s{T1}, s{S_WN}, 8\ns_add_u32 s{T0}, s{T0}, s{T1}\n"
             f"v_add_u32 v57, s{T0}, v{LVC8}\nds_write_b64 v57, v[62:63]\nds_write_b64 v57, v[{c}:{c+1}] offset:512")
    return L


def row_voff(vd, sh, so):
    return (f"v_lshrrev_b32 v{vd}, 4, v1\nv_lshlrev_b32 v{vd}, 10, v{vd}\nv_and_b32 v57, 15, v1\nv_lshl_add_u32 v{vd}, v57, 2, v{vd}\nv_lshlrev_b32 v{vd}, {sh}, v{vd}\n"
            f"s_lshl_b32 s{so}, s{S_ST}, 1\ns_add_u32 s{so}, s{so}, s{S_WN}\ns_lshl_b32 s{so}, s{so}, 10\ns_lshl_b32 s{T3}, s{S_DT2}, 1\ns_add_u32 s{so}, s{so}, s{T3}\n"
            f"s_add_u32 s{so}, s{so}, s{S_WM}\ns_lshl_b32 s{so}, s{so}, {6+sh}")


def base_units():
    SX, SR, SD, SRO = 56, 60, 64, 68
    setup = "\n".join([srd_s(SX, 'x', 0, 4 * MB), srd_s(SR, 'ws', WS_ST, 65536), srd_s(SD, 'dsk', 0, 2048), row_voff(3, 1, S_RO),
                       f"v_lshlrev_b32 v57, 3, v57\nv_lshrrev_b32 v4, 4, v1\nv_lshlrev_b32 v4, 3, v4\ns_mov_b32 s{S_MSK}, 0xffff0000",
                       f"s_lshl_b32 s{T3}, s{S_DT2}, 1\ns_add_u32 s{T3}, s{T3}, s{S_WM}\ns_lshl_b32 s{T3}, s{T3}, 7\n"
                       f"buffer_load_dwordx2 v[{LDS_+2}:{LDS_+3}], v57, s[{SD}:{SD+3}], s{T3} offen",
                       f"s_lshl_b32 s{SRO}, s{S_ST}, 1\ns_add_u32 s{SRO}, s{SRO}, s{S_WN}\ns_lshl_b32 s{SRO}, s{SRO}, 11"])
    loads = []
    for i in range(16):
        b = LB + 4 * i
        loads.append(f"buffer_load_dwordx2 v[{b}:{b+1}], v3, s[{SX}:{SX+3}], s{S_RO} offen\ns_add_u32 s{S_RO}, s{S_RO}, 8192\n"
                     f"buffer_load_dwordx2 v[{b+2}:{b+3}], v4, s[{SR}:{SR+3}], s{SRO} offen offset:{(i>>1)*256+128+(i&1)*32}")
    X, Y, MB_, DS = LXX, LXX + 4, LXX + 8, LDS_

    def unp(d, a, b):
        return f"v_lshlrev_b32 v{d}, 16, v{a}\nv_and_b32 v{d+1}, s{S_MSK}, v{a}\nv_lshlrev_b32 v{d+2}, 16, v{b}\nv_and_b32 v{d+3}, s{S_MSK}, v{b}"
    cv = [rb1(Y + k, Y + k) for k in range(4)]
    G = []
    for i in range(16):
        b = LB + 4 * i
        U = []
        if i == 0:
            U.append(unp(DS, DS + 2, DS + 3))
        U.append(unp(X, b, b + 1))
        U.append(f"v_lshlrev_b32 v{MB_}, 16, v{b+2}\nv_and_b32 v{MB_+1}, s{S_MSK}, v{b+2}")
        U += [f"v_sub_f32 v{Y+k}, v{X+k}, v{MB_}" for k in range(4)] + cv
        U += [f"v_mul_f32 v{Y+k}, v{Y+k}, v{b+3}" for k in range(4)] + cv
        U += [f"v_mul_f32 v{Y+k}, v{Y+k}, v{DS+k}" for k in range(4)] + cv
        U += [f"v_add_f32 v{X+k}, v{X+k}, v{MB_+1}" for k in range(4)]
        U += [f"v_add_f32 v{b+k}, v{X+k}, v{Y+k}" for k in range(4)]
        G.append("\n".join(U))
    return setup, loads, G


SEG = {}
NW2 = [0]


def loader_pro(e):
    e(f"s_lshl_b32 s{S_M0B}, s{S_W}, 12\ns_mov_b32 s{S_SLOT}, s{S_M0B}")
    z = f"s_mov_b32 s{S_A}, 0\ns_mov_b32 s{S_B}, 0"
    SEG['bu'] = bu = Seg(8, 56, 128, 128, z)
    SEG['m1'] = Seg(16, 64, 64 * 7168, 8 * 1024 * 16, z)
    SEG['ch'] = Seg(24, 72, 128, 64 * 4096, f"s_mov_b32 s{S_A}, 0\ns_lshl_b32 s{S_B}, s{S_KH}, 22")
    SEG['uw'] = Seg(32, 80, 8 * 1024 * 16, 64 * 4096, f"s_mul_i32 s{S_A}, s{S_KH}, 0x{KO*8*1024*16:x}\ns_mul_i32 s{S_B}, s{S_KH}, 0x{KO*64*4096:x}")
    e(f"s_cmp_eq_u32 s{S_WN}, 0\ns_cselect_b32 s60, s{P['bre']}, s{P['bim']}\ns_cselect_b32 s61, s{P['bre']+1}, s{P['bim']+1}")
    e(f"s_lshl_b32 s{T3}, s{S_LT}, 7")
    ld_voff_kc(e, 8, T3, 2048, scan=True)
    e(f"s_lshl_b32 s{T3}, s{S_PT}, 6")
    ld_voff_kc(e, 12, T3, 2048, bcat=True)
    ld = Ld(e)
    ld.issue(0, bu, 0)
    srd(e, 64, 'lre', 0, 2048)
    srd(e, 68, 'lim', 0, 2048)
    srd(e, 72, 'ldt', 0, 2048)
    srd(e, SL_AGG, 'ws', WS_AGG, 131072)
    e(f"v_and_b32 v3, 31, v1\nv_lshlrev_b32 v{LVC8}, 3, v3\nv_lshlrev_b32 v3, 1, v3\ns_lshl_b32 s{T3}, s{S_PT}, 1\ns_add_u32 s{T3}, s{T3}, s{S_WN}\ns_lshl_b32 s{T0}, s{T3}, 6")
    ld.extra(f"buffer_load_ushort v58, v3, s[64:67], s{T0} offen\nbuffer_load_ushort v59, v3, s[68:71], s{T0} offen\nbuffer_load_ushort v60, v3, s[72:75], s{T0} offen")
    ld.mark(0)
    e(f"s_lshl_b32 s{T3}, s{T3}, 4\ns_add_u32 s{T3}, s{T3}, s{S_LT}\ns_lshl_b32 s{T3}, s{T3}, 8\nv_mov_b32 v6, -1\nv_mov_b32 v7, -1")
    e(m0only(e, f"buffer_store_dwordx2 v[6:7], v{LVC8}, s[{SL_AGG}:{SL_AGG+3}], s{T3} offen sc1"))
    ts(e, 10)
    e(f"s_waitcnt vmcnt({ld.ops})")
    ts(e, 11)
    x = E()
    ln_row(x)
    L = "\n".join(x.L).split("\n")
    h = len(L) // 2
    ld.issue(1, bu, 1, fill=L[:h])
    ld.issue(2, bu, 2, fill=L[h:])
    ln_tail(e)
    return ld


def loader(e, ld, PUB):
    bu, m1, ch, uw = SEG['bu'], SEG['m1'], SEG['ch'], SEG['uw']

    def sub(f):
        x = E()
        f(x)
        return x.L

    def org(x, t, sh):
        x(f"s_lshl_b32 s{T3}, s{t}, {sh}")
        return T3

    def set_m1(x):
        srd(x, 64, 'w1', 0, 2048 * 3584 * 2)
        srd(x, 68, 'ws', WS_HH - 4096, 4 * MB + 4096)
        ld_voff_ks(x, 16, org(x, S_FT, 7), 7168)
        ld_voff_kb(x, 20, org(x, S_DT1, 7), 1024)
        srd(x, SL_FLG, 'ws', WS_FLG, 16384)
        srd(x, SL_DBG, 'dbg', 0, 256)
        x(f"v_lshlrev_b32 v{VSO}, 2, v1\nv_mov_b32 v6, 1\ns_lshl_b32 s{T0}, s2, 2\nv_lshl_add_u32 v7, v1, 10, s{T0}")
        x(f"s_and_b32 s{S_CNT}, s2, 3\ns_lshl_b32 s{S_CNT}, s{S_CNT}, 10")

    def set_ch(x):
        x(f"s_cmp_eq_u32 s{S_KH}, 0\ns_cselect_b32 s72, s{P['cre']}, s{P['cim']}\ns_cselect_b32 s73, s{P['cre']+1}, s{P['cim']+1}")
        x(f"s_mov_b32 s74, 0x{2*MB:x}\ns_mov_b32 s75, 0x20000")
        srd(x, 76, 'ws', WS_HP, 8 * MB)
        ld_voff_kc(x, 24, org(x, S_DT2, 7), 2048, scan=True)
        ld_voff_kt(x, 28, S_ST)

    def set_uw(x):
        srd(x, 80, 'ws', WS_U - 4096, 1024 * 3584 * 2 + 4096)
        srd(x, 84, 'w2', 0, 3584 * 2048 * 2)
        ld_voff_kb(x, 32, org(x, S_DT2, 7), 1024)
        ld_voff_ks(x, 36, org(x, S_ST, 7), 4096)
        x(f"s_lshl_b32 s30, s{S_ST}, 8\ns_add_u32 s30, s30, {F_H}")
        x(f"s_lshl_b32 s31, s{S_DT2}, 9\ns_mul_i32 s{T0}, s{S_KH}, {8*KO}\ns_add_u32 s31, s31, s{T0}\ns_add_u32 s31, s31, {F_U}")

    H = {}
    ts(e, 12)
    hook(H, 'pre', 0, lambda l: ts(e, 13))
    ca, cb, cc = consts()
    H[('fill', 0)] = ca + cb
    H[('fill', 1)] = sub(set_m1)
    H[('fill', 2)] = cc
    H[('fill', 3)] = sub(set_ch)
    H[('fill', 4)] = sub(set_uw)
    pfl = f"buffer_load_dwordx4 v[40:43], v2, s[64:67], s{S_CNT} offen {PFM}\ns_add_u32 s{S_CNT}, s{S_CNT}, 0x{MB:x}"

    def spf(H, b0, b1, sr, n, nw, st=0):
        if "nopf" in OPT or "nospf" in OPT or not n:
            return st + (b1 - b0) * n * SG * nw
        for b in range(b0, b1):
            f = H.setdefault(('fill', b), [])
            if b == b0:
                f.append(f"s_lshl_b32 s6, s2, 2\ns_add_u32 s6, s6, s{S_W}\ns_mul_i32 s6, s6, {n*SG}\ns_add_u32 s6, s6, 0x{st:x}")
            if SG == 128:
                f.extend(f"s_buffer_load_dwordx2 s[8:9], s[{sr}:{sr+3}], s6 offset:{i*SG+60}" for i in range(n))
            else:
                f.extend(f"s_buffer_load_dword s8, s[{sr}:{sr+3}], s6 offset:{i*SG}" for i in range(n))
            f.append(f"s_add_u32 s6, s6, 0x{n*SG*nw:x}")
        return st + (b1 - b0) * n * SG * nw
    W1S = spf(H, SP0, min(SP1, 16), 64, NP1, 1024)
    HS = {k: list(v) for k, v in H.items() if k[0] == 'fill'}
    W1S = spf(H, 16, max(SP1, 16), 64, NP1, 896, W1S)

    def dsample(l):
        e(l0(e, f"{exm(4)}\n{smp(SL_DBG, 0)}\ns_mov_b64 exec, -1"))
        l.mark('dbg')
    hook(H, 'pre', DSM, dsample)
    hook(H, 'pre', ARR + 1, lambda l: e(l0(e, poll(e, SL_DBG, 0, 0, 4, "1", l.cnt('dbg')) +
                                           f"\ns_mov_b64 exec, 15\nbuffer_store_dword v6, v7, s[{SL_FLG}:{SL_FLG+3}], 0 offen sc1\ns_mov_b64 exec, -1")))
    nbu = 16 - NS + 1
    asm = f"buffer_load_dwordx4 v[40:43], v2, s[{SL_FLG}:{SL_FLG+3}], s{S_CNT} offen sc1"

    def asample(l):
        e(l0(e, asm))
        l.mark('arr')

    def acheck(l):
        lp, ok = e.lab("Lap"), e.lab("Lao")
        e(l0(e, f"s_mov_b32 s{T2}, {TMO}\ns_waitcnt vmcnt({l.cnt('arr')})\n{lp}:\nv_and_b32 v40, v40, v41\nv_and_b32 v42, v42, v43\nv_and_b32 v40, v40, v42\n"
                f"v_cmp_ne_u32 vcc, 1, v40\ns_nop 1\ns_cbranch_vccz {ok}\ns_sleep {SLP}\n{asm}\ns_waitcnt vmcnt(0)\ns_sub_u32 s{T2}, s{T2}, 1\ns_cbranch_scc0 {lp}\n{ok}:"))
    hook(H, 'pre', nbu - ALD, asample)
    hook(H, 'chk', nbu, acheck)
    if "ibs" in OPT:
        for n, b in zip((1, 2, 3, 4, 7, 8, 9), (6, 9, 12, 31, 36, 41, 46)):
            hook(H, 'pre', b, lambda l, n=n: e(f"s_getreg_b32 s100, hwreg(HW_REG_IB_STS)\nv_writelane_b32 v{VTS}, s100, {n}"))
    stA = [(bu, j) for j in range(16)]
    ld.run(stA, 0, nbu, H)
    for f in H.pop(('chk', nbu)):
        f(ld)
    spare, common = e.lab("Lsp"), e.lab("Lcm")
    e(f"s_cmp_ge_u32 s{S_IDX}, 28\ns_cbranch_scc1 {spare}")
    sp = ld.copy()
    stB = stA + [(m1, j) for j in range(32)] + [(ch, j) for j in range(NS - 1)]
    hook(H, 'pre', PUB, lambda l: e(m0only(e, agg_read())))
    hook(H, 'post', PUB, lambda l: e(m0only(e, agg_store())))
    hook(H, 'pre', PUB + GA, lambda l: e(m0only(e, agg_gather())))
    hook(H, 'pre', PUB + GA + 3, lambda l: e(m0only(e, agg_check(e, SLA))))
    H[('fill', PUB + GA + 3)] = agg_horner()
    add_check(H, e, 45, SL_FLG, "s30", 0, 32, "1")
    b0 = PUB + GA + 4
    W1E = (14 - NB0 - NB1) * MB - SW1 * NP2 * SG * 896
    spf(H, b0, b0 + SW1, 64, NP2, 896, W1E)
    W2S = spf(H, b0 + SW1, 48, 84, NP2, 896, NB2 * MB) + NW2[0] * 896 * 1024
    for bi, bn in BUR:
        t = f"s_lshl_b32 s6, s2, 2\ns_add_u32 s6, s6, s{S_W}\ns_lshl_b32 s6, s6, 10\ns_add_u32 s6, s6, 0x{W2S:x}"
        for i in range(bn):
            t += f"\nbuffer_load_dwordx4 v[40:43], v2, s[84:87], s6 offen\ns_add_u32 s6, s6, 0x{896*1024:x}"
        W2S += bn * 896 * 1024
        hook(H, 'post', bi, lambda l, t=t: l.extra(t))
    HC = {}
    W2S = spf(HC, 0, SW2, 84, NP2, 1024, W2S)
    print("W1S, W1E, W2S", W1S / MB, W1E / MB, W2S / MB, file=sys.stderr)
    ld.run(stB, nbu, 48, H)
    e(f"s_branch {common}")
    e(f"{spare}:")
    rest = sum(1 for b in PFS if b >= 15)
    sp.run(stA, nbu, 16, HS)
    e("s_barrier\ns_barrier")
    e(m0only(e, agg_read() + "\n" + agg_store()))
    e(f"s_lshl_b32 s{S_CNT}, s2, 2\ns_add_u32 s{S_CNT}, s{S_CNT}, s{S_W}\ns_lshl_b32 s{S_CNT}, s{S_CNT}, 10\ns_add_u32 s{S_CNT}, s{S_CNT}, 0x{(14-rest)*MB:x}")
    for i in range(rest):
        e(pfl)
    e(f"s_sub_u32 s{S_RO}, s{S_IDX}, 28\ns_lshl_b32 s{S_RO}, s{S_RO}, 3\ns_add_u32 s{S_RO}, s{S_RO}, s{S_XCD}\ns_lshl_b32 s{S_RO}, s{S_RO}, 2\ns_add_u32 s{S_RO}, s{S_RO}, s{S_W}\ns_lshl_b32 s{S_RO}, s{S_RO}, 10")

    def pf_loop(nm, sz, st=0, en=None):
        en = min(sz, en or sz)
        if "nopf" in OPT or st >= en:
            return
        srd(e, 56, nm, 0, sz)
        l = e.lab("Lpf")
        ck = 4 * 131072 + NSB * 16384
        e(f"s_add_u32 s{T2}, s{S_RO}, 0x{st:x}\ns_mov_b32 s{S_CNT}, {(en-st+ck-1)//ck}\ns_lshr_b32 s6, s{S_RO}, 10\ns_mul_i32 s6, s6, {NSB*128}\ns_add_u32 s6, s6, 0x{st+4*131072:x}\n{l}:")
        for i in range(4):
            e(f"buffer_load_dwordx4 v[40:43], v2, s[56:59], s{T2} offen {PFM}\ns_add_u32 s{T2}, s{T2}, 0x{131072+(NSB*16384 if i == 3 else 0):x}")
            for k in range(i * NSB // 4, (i + 1) * NSB // 4):
                e(f"s_buffer_load_dwordx2 s[8:9], s[56:59], s6 offset:{k*128+60}")
        e(f"s_add_u32 s6, s6, 0x{ck:x}")
        e(f"s_waitcnt vmcnt({PFW})\ns_sub_u32 s{S_CNT}, s{S_CNT}, 1\ns_cmp_lg_u32 s{S_CNT}, 0\ns_cbranch_scc1 {l}")
    W2E = 14 * MB - NCW * 65536
    R = [('w1', 14 * MB, 14 * MB if PFS else W1S, W1E), ('cre', 2 * MB, 0, 2 * MB), ('cim', 2 * MB, 0, 2 * MB), ('w2', 14 * MB, W2S, W2E)]
    tot = sum(max(0, r[3] - r[2]) for r in R)

    def pf_take(n):
        while n > 0 and R:
            nm, sz, st, en = R[0]
            k = min(n, max(0, en - st))
            pf_loop(nm, sz, st, st + k)
            n -= k
            if st + k >= en:
                R.pop(0)
            else:
                R[0] = (nm, sz, st + k, en)
    pf_take(G0 * MB // 2)
    e(m0only(e, agg_gather() + "\ns_waitcnt vmcnt(0)\n" + agg_check(e, 2 * SLA) + "\n" + "\n".join(agg_horner())))
    e("s_waitcnt lgkmcnt(0)\ns_barrier")
    ts(e, 7)
    pf_take(tot - G0 * MB // 2 - W2H * MB)
    e(l0(e, smp(SL_FLG, "s30") + "\n" + poll(e, SL_FLG, "s30", 0, 64, "1", 0, 16)))
    pf_take(tot)
    ts(e, 8)
    e("s_barrier")
    ts(e, 9)
    ld = Ld(e)
    for j in range(NS - 1):
        ld.issue(j, ch, j)
    e(f"{common}:")
    stC = [(ch, j) for j in range(16)]
    H = HC
    add_check(H, e, 5, SL_FLG, "s30", 128, 32, "1")
    add_check(H, e, nbu, SL_FLG, "s31", 0, 16, "1")
    ld.run(stC, 0, nbu, H)
    for f in H.pop(('chk', nbu)):
        f(ld)
    snd = e.lab("Lls")
    e(f"s_cmp_eq_u32 s{S_KH}, 1\ns_cbranch_scc1 {snd}")
    sd = ld.copy()

    def uchecks(n):
        H = {}
        for g in range(1, (n + 7) // 8):
            add_check(H, e, nbu + 8 * g, SL_FLG, "s31", 64 * g, 2 * min(8, n - 8 * g), "1")
        return H
    T = 16 + KO
    st = stC + [(uw, j) for j in range(KO)]
    H = uchecks(KO)
    setup, loads, G = base_units()
    hook(H, 'post', BL0 - 1, lambda l: l.extra(setup))
    for i in range(16):
        H.setdefault(('fill', BL0 + i), []).append(loads[i])
        H.setdefault(('fill', BL0 + i + 4), []).append(G[i])
    assert BL0 + 20 <= T - 2 * NS + 1

    def xsetup(l):
        srd(e, 56, 'ws', WS_XCH, 4 * MB)
        srd(e, 64, 'out', 0, 8 * MB)
        e(row_voff(3, 2, S_RO))
        e(f"s_lshl_b32 s{T3}, s{S_ST}, 3\ns_add_u32 s{T3}, s{T3}, s{S_DT2}\ns_lshl_b32 s{T3}, s{T3}, 2\ns_add_u32 s{T3}, s{T3}, s{S_W}\n"
          f"s_lshl_b32 s{S_CNT}, s{T3}, 13\ns_lshl_b32 s{T3}, s{T3}, 2\ns_add_u32 s{T3}, s{T3}, {F_X}\nv_mov_b32 v{VXO}, s{T3}")
        e("v_bfe_u32 v4, v1, 2, 1\nv_lshlrev_b32 v4, 12, v4\nv_bfe_u32 v57, v1, 1, 1\nv_lshl_add_u32 v4, v57, 10, v4\nv_bfe_u32 v57, v1, 3, 1\nv_lshl_add_u32 v4, v57, 9, v4\n"
          "v_lshrrev_b32 v57, 4, v1\nv_lshl_add_u32 v4, v57, 4, v4\nv_and_b32 v57, 1, v1\nv_lshl_add_u32 v4, v57, 3, v4")
        e(f"s_mul_i32 s{T0}, s{S_W}, {64*272}\nv_lshrrev_b32 v6, 4, v1\nv_mul_u32_u24 v6, 272, v6\nv_and_b32 v7, 15, v1\nv_lshl_add_u32 v6, v7, 4, v6\nv_add_u32 v6, s{T0}, v6")
    hook(H, 'post', BL0 + 16, xsetup)
    xs = f"buffer_load_dword v{VXS}, v{VXO}, s[{SL_FLG}:{SL_FLG+3}], 0 offen sc1"
    pl = "\n".join(f"buffer_load_dwordx2 v[{LPT+2*i}:{LPT+2*i+1}], v4, s[56:59], s{S_CNT} offen offset:{(i>>3)*2048+(i&7)*64}" for i in range(16)) + "\n"
    tst = f"v_cmp_ne_u32 vcc, 1, v{VXS}\ns_nop 1\ns_cbranch_vccz "
    hook(H, 'pre', T - 2 * NS + 1, lambda l: l.extra(xs))
    ld.run(st, nbu, T - NS + 1, H)
    early, mid, fin = e.lab("Lxe"), e.lab("Lxm"), e.lab("Lxf")
    e(tst + early)
    l2 = ld.copy()
    ld.extra(xs)
    ld.run(st, T - NS + 1, T - 1, {})
    e("s_waitcnt vmcnt(0)\ns_barrier")
    e(tst + mid)
    e(xs + "\ns_barrier")
    lp = e.lab("Lxp")
    e(f"s_mov_b32 s{T2}, {TMO*4}\n{lp}:\ns_waitcnt vmcnt(0)\n{tst}{lp}_ok\ns_sleep 2\n{xs}\ns_sub_u32 s{T2}, s{T2}, 1\ns_cbranch_scc0 {lp}\n{lp}_ok:")
    e(pl + f"s_branch {fin}")
    e(f"{mid}:\n{pl}s_barrier\ns_branch {fin}")
    e(f"{early}:")
    l2.extra(pl)
    l2.run(st, T - NS + 1, T, {})
    e("s_barrier")
    e(f"{fin}:")
    ts(e, 5)
    e("s_waitcnt vmcnt(0)")
    for i in range(64):
        e(f"v_fma_mix_f32 v{LB+i}, v{LPT+i//2}, 1.0, v{LB+i} op_sel:[{i&1},0,0] op_sel_hi:[1,0,0]")
    e("s_barrier")
    for i in range(16):
        e(f"ds_read_b128 v[{LR+4*i}:{LR+4*i+3}], v6 offset:{i*4*272}")
    for i in range(16):
        a = 4 * i
        e(f"s_waitcnt lgkmcnt({15-i})")
        e(f"v_pk_add_f32 v[{LR+a}:{LR+a+1}], v[{LR+a}:{LR+a+1}], v[{LB+a}:{LB+a+1}]\nv_pk_add_f32 v[{LR+a+2}:{LR+a+3}], v[{LR+a+2}:{LR+a+3}], v[{LB+a+2}:{LB+a+3}]")
        e(f"buffer_store_dwordx4 v[{LR+a}:{LR+a+3}], v3, s[64:67], s{S_RO} offen {OUTM}\ns_add_u32 s{S_RO}, s{S_RO}, 16384")
    ts(e, 6)
    ts_store(e)
    e("s_endpgm")
    e(f"{snd}:")
    T = 16 + 56 - KO
    st = stC + [(uw, j) for j in range(56 - KO)]
    sd.run(st, nbu, T, uchecks(56 - KO))
    e("s_barrier")
    ts(e, 5)
    ts(e, 6)
    ts_store(e)
    e("s_endpgm")


VC8 = 7
AR, AI, CR, CI, P32R, P32I = 8, 9, 10, 11, 12, 13
MLO, MHI, RLO, RHI = 14, 15, 30, 31
NBR, NBI, LOR, LOI = 32, 33, 34, 35
S_G32, S_CH, S_DONE = 79, 80, 84
S_FHo, S_FUo, S_FXo = 76, 77, 78
SR_HH, SR_FLG, SR_HP, SR_U, SR_B1, SR_ST, SR_PF, S_PFO = 56, 60, 64, 68, 72, 88, 92, 85


class Opnd:
    def __init__(s, mode, lds_off, base, cur, perm):
        s.mode, s.lds_off, s.base, s.cur, s.perm = mode, lds_off, base, cur, perm
        s.nread = 4 if mode in ('KS', 'KT') else 2


def cw_base(e, op, s_wx, t0=36, t1=3, t2=4, t3=37):
    va = op.base
    if op.mode == 'KB':
        e(f"v_and_b32 v{t0}, 31, v1\nv_lshrrev_b32 v{t1}, 5, v1\nv_lshlrev_b32 v{t0}, 4, v{t0}\nv_lshl_add_u32 v{t0}, v{t1}, 11, v{t0}")
        e(f"s_lshl_b32 s{T0}, s{s_wx}, 10\ns_add_u32 s{T0}, s{T0}, {op.lds_off}\nv_add_u32 v{va}, s{T0}, v{t0}")
    elif op.mode == 'KT':
        e(f"v_bfe_u32 v{t0}, v1, 4, 1\nv_bfe_u32 v{t1}, v1, 1, 1\nv_lshl_add_u32 v{t0}, v{t0}, 1, v{t1}")
        e(f"v_bfe_u32 v{t1}, v1, 2, 2\nv_lshrrev_b32 v{t2}, 5, v1\nv_lshl_add_u32 v{t1}, v{t2}, 3, v{t1}")
        e(f"v_lshlrev_b32 v{t2}, 2, v{t0}\nv_xor_b32 v{t1}, v{t1}, v{t2}\nv_lshlrev_b32 v{t1}, 4, v{t1}\nv_lshl_add_u32 v{t1}, v{t0}, 10, v{t1}")
        e(f"v_and_b32 v{t2}, 1, v1\nv_lshl_add_u32 v{t1}, v{t2}, 3, v{t1}")
        e(f"s_lshl_b32 s{T0}, s{s_wx}, 13\ns_add_u32 s{T0}, s{T0}, {op.lds_off}\nv_add_u32 v{va}, s{T0}, v{t1}")
    elif op.mode == 'KC':
        e(f"v_and_b32 v{t0}, 31, v1\nv_lshrrev_b32 v{t1}, 5, v1")
        if op.perm == 'scan':
            e(f"v_bfe_u32 v{t2}, v{t0}, 2, 1\nv_lshlrev_b32 v{t2}, 5, v{t2}\nv_lshrrev_b32 v{t3}, 3, v{t0}")
            e(f"v_lshl_add_u32 v{t2}, v{t3}, 2, v{t2}\nv_and_b32 v{t0}, 3, v{t0}\nv_add_u32 v{t0}, v{t0}, v{t2}")
            e(f"v_bfe_u32 v{t2}, v{t0}, 1, 2\nv_bfe_u32 v{t3}, v{t0}, 5, 1\nv_lshl_add_u32 v{t2}, v{t3}, 2, v{t2}")
        else:
            e(f"v_bfe_u32 v{t2}, v{t0}, 1, 3")
        e(f"s_lshl_b32 s{T0}, s{s_wx}, 6\nv_add_u32 v{t0}, s{T0}, v{t0}")
        e(f"v_xor_b32 v{t1}, v{t1}, v{t2}\nv_lshlrev_b32 v{t1}, 4, v{t1}")
        e(f"v_lshl_add_u32 v{t0}, v{t0}, 7, v{t1}\nv_add_u32 v{va}, {op.lds_off}, v{t0}")
    else:
        e(f"v_bfe_u32 v{t0}, v1, 2, 2\nv_lshrrev_b32 v{t1}, 5, v1\nv_lshl_add_u32 v{t1}, v{t1}, 3, v{t0}\nv_lshlrev_b32 v{t1}, 8, v{t1}")
        if op.perm == 'nat':
            e(f"v_bfe_u32 v{t2}, v1, 4, 1\nv_lshlrev_b32 v{t2}, 5, v{t2}\nv_and_b32 v{t3}, 3, v1\nv_lshl_add_u32 v{t2}, v{t3}, 3, v{t2}")
        else:
            e(f"v_bfe_u32 v{t2}, v1, 4, 1\nv_lshlrev_b32 v{t2}, 5, v{t2}\nv_and_b32 v{t3}, 1, v1\nv_lshl_add_u32 v{t2}, v{t3}, 4, v{t2}")
            e(f"v_bfe_u32 v{t3}, v1, 1, 1\nv_lshl_add_u32 v{t2}, v{t3}, 3, v{t2}")
        e(f"v_add_u32 v{t1}, v{t1}, v{t2}\nv_add_u32 v{t1}, {op.lds_off}, v{t1}")
        e(f"s_lshl_b32 s{T0}, s{s_wx}, 1\nv_xor_b32 v{t2}, s{T0}, v{t0}\nv_lshl_add_u32 v{va}, v{t2}, 6, v{t1}")


def cur_addr(op):
    L = [f"v_add_u32 v{op.cur}, s{S_SLOT}, v{op.base}"]
    if op.mode == 'KC':
        L += [f"v_xor_b32 v{op.cur+kk}, {kk<<5}, v{op.cur}" for kk in range(1, 4)]
    elif op.mode in ('KS', 'KT'):
        L += [f"v_xor_b32 v{op.cur+1}, 64, v{op.cur}"]
    return L


FR = 40


def frag_reads(op, kk, dst):
    R = []
    for j in range(2):
        d = dst + 4 * j
        if op.mode == 'KB':
            R.append(f"ds_read_b128 v[{d}:{d+3}], v{op.cur} offset:{kk*4096+j*512}")
        elif op.mode == 'KC':
            jo = 2048 if op.perm == 'scan' else 4096
            R.append(f"ds_read_b128 v[{d}:{d+3}], v{op.cur+kk} offset:{j*jo}")
        elif op.mode == 'KT':
            for t in range(2):
                R.append(f"ds_read_b64_tr_b16 v[{d+2*t}:{d+2*t+1}], v{op.cur+t} offset:{kk*256+j*4096}")
        else:
            for t in range(2):
                R.append(f"ds_read_b64_tr_b16 v[{d+2*t}:{d+2*t+1}], v{op.cur+j} offset:{kk*4096+t*1024}")
    return R


def reads(ops, kk):
    A, B = ops
    d = FR + 16 * kk
    a, b = frag_reads(A, kk, d), frag_reads(B, kk, d + 8)
    ha, hb = len(a) // 2, len(b) // 2
    return a[:ha] + b[:hb] + b[hb:] + a[ha:]


def mfmas(acc, kk, zero=False):
    d = FR + 16 * kk
    M = []
    for j in range(2):
        for jn in range(2):
            a = acc + 32 * j + 16 * jn
            M.append(f"v_mfma_f32_32x32x16_bf16 v[{a}:{a+15}], v[{d+4*j}:{d+4*j+3}], v[{d+8+4*jn}:{d+8+4*jn+3}], " + ("0" if zero else f"v[{a}:{a+15}]"))
    return M


TRANS = ("v_exp_f32", "v_rcp_f32", "v_sqrt_f32", "v_sin_f32", "v_cos_f32", "v_log_f32", "v_mul_lo_u32")


def ucost(u):
    c = 0
    for l in u.split("\n"):
        l = l.strip()
        if not l or l.endswith(":"):
            continue
        if l.startswith("s_cbranch"):
            break
        c += 8 if l.startswith(TRANS) or l.startswith(("buffer_", "ds_")) else 4
    return c


class Side:
    def __init__(s, items=(), bud=BUD):
        s.q = list(items)
        s.until = 0
        s.credit = 0
        s.bud = bud
        s.notes = {}
        s.g = 0

    def take(s, budget):
        out = []
        g = s.g
        s.g += 1
        nxtbar = (g // 16) * 16 + 12 if g % 16 < 12 else (g // 16 + 1) * 16 + 12
        if g < s.until:
            return out
        s.credit = min(s.credit + budget, budget + 8)
        while s.q:
            u = s.q[0]
            if isinstance(u, tuple):
                s.q.pop(0)
                if u[0] == 'note':
                    s.notes[u[1]] = nxtbar // 16 + 1
                    continue
                s.until = {'gap': lambda: g + u[1], 'bar': lambda: (u[1]() - 1) * 16 + 12, 'lds': lambda: nxtbar}[u[0]]()
                if s.until > g:
                    s.credit = 0
                    break
                continue
            c = ucost(u)
            if c > s.credit and (out or c <= 32):
                break
            out.append(s.q.pop(0))
            s.credit -= c
        return out

    def flush(s, e):
        for u in s.q:
            if not isinstance(u, tuple):
                e(u)
            elif u[0] == 'lds':
                e("s_waitcnt lgkmcnt(0)")
            elif u[0] == 'note':
                e("s_waitcnt lgkmcnt(0)\ns_barrier")
            elif u[0] == 'bar':
                e("s_barrier")
        s.q = []


def step(e, cur, nxt, acc, side=None, zero=False, pre=None, post=None):
    nr = cur[0].nread + cur[1].nread

    def inter(M, R):
        per = (len(R) + 3) // 4
        for i in range(4):
            e(M[i])
            rr = R[i * per:(i + 1) * per]
            for r in rr:
                e(r)
            if side is not None:
                rc = sum(8 if r.startswith("ds_read_b128") else RCT if r.startswith("ds_") else 4 for r in rr)
                for u in side.take(max(side.bud - rc, 0)):
                    e(u)

    e(f"s_waitcnt lgkmcnt({nr})")
    inter(mfmas(acc, 0, zero), reads(cur, 2))
    e(f"s_waitcnt lgkmcnt({nr})")
    inter(mfmas(acc, 1), reads(cur, 3))
    e(f"s_add_u32 s{S_SLOT}, s{S_SLOT}, {STG}\ns_cmp_ge_u32 s{S_SLOT}, {NS*STG}\ns_cselect_b32 s{S_SLOT}, 0, s{S_SLOT}")
    e(f"s_waitcnt lgkmcnt({nr})")
    inter(mfmas(acc, 2), (cur_addr(nxt[0]) + cur_addr(nxt[1])) if nxt else [])
    for f in pre or ():
        f()
    e("s_waitcnt lgkmcnt(0)\ns_barrier")
    inter(mfmas(acc, 3), (reads(nxt, 0) + reads(nxt, 1)) if nxt else [])
    for f in post or ():
        f()


def rolled(e, ops, acc, n, post=None):
    l = e.lab("Lg")
    e(f"s_mov_b32 s{S_CNT}, {n}" if isinstance(n, int) else n)
    e(f".p2align 5\n{l}:")
    step(e, ops, ops, acc, post=post)
    e(f"s_sub_u32 s{S_CNT}, s{S_CNT}, 1\ns_cmp_lg_u32 s{S_CNT}, 0\ns_cbranch_scc1 {l}")


def gemm_start(e, ops):
    for t in cur_addr(ops[0]) + cur_addr(ops[1]):
        e(t)
    e("s_waitcnt lgkmcnt(0)\ns_barrier")
    for r in reads(ops, 0) + reads(ops, 1):
        e(r)


def gemm(e, ops, nxt, acc, n, side, pre={}, post={}, name="", rpost=None):
    k = 0
    last = max(list(pre) + list(post) + [0])
    while k < n - 1 and (k == 0 or k <= last or (side is not None and side.q)):
        step(e, ops, ops, acc, side, k == 0, pre.get(k), post.get(k))
        k += 1
    print(f"{name}: unrolled {k} steps, side left {len(side.q) if side else 0}", file=sys.stderr)
    if n - 1 - k >= 2:
        rolled(e, ops, acc, n - 1 - k, rpost)
    else:
        for _ in range(n - 1 - k):
            step(e, ops, ops, acc, post=rpost)
    if side is not None:
        side.flush(e)
    step(e, ops, nxt, acc)
    return n - 1 - k


def gre(t):
    return ACB + 32 * (t >> 4) + (t & 15)


def gim(t):
    return gre(t) + 16


def flag_units(e, so, tries, gap):
    st = (f"v_mov_b32 v36, 0\nv_mov_b32 v3, 1\ns_mov_b64 exec, 1\nbuffer_store_dword v3, v36, s[{SR_FLG}:{SR_FLG+3}], s{so} offen sc1\n"
          f"s_mov_b64 exec, -1\ns_mov_b32 s{S_DONE}, 1")
    S = [f"s_mov_b32 s{S_DONE}, 0"]
    for i in range(tries):
        l = e.lab("Lf")
        S.append(('gap', gap))
        S.append(f"s_getreg_b32 s{T3}, hwreg(HW_REG_IB_STS)\ns_and_b32 s{T3}, s{T3}, 0xc0000f\ns_or_b32 s{T3}, s{T3}, s{S_DONE}\ns_cbranch_scc1 {l}\n{st}\n{l}:")
    l = e.lab("Lf")
    S.append(('gap', gap))
    S.append(f"s_cmp_lg_u32 s{S_DONE}, 0\ns_cbranch_scc1 {l}\ns_waitcnt vmcnt(0)\n{st}\n{l}:")
    return S


def pf_org():
    return f"s_lshl_b32 s{S_PFO}, s2, 2\ns_add_u32 s{S_PFO}, s{S_PFO}, s{S_W}\ns_lshl_b32 s{S_PFO}, s{S_PFO}, 10"


def pf_ld(d, inc, sr=SR_PF):
    return f"buffer_load_dwordx4 v[{d}:{d+3}], v6, s[{sr}:{sr+3}], s{S_PFO} offen {PFM}\ns_add_u32 s{S_PFO}, s{S_PFO}, 0x{inc:x}"


def side_scan(e, carbar, spare=False):
    S = [f"s_waitcnt vmcnt({sum(1 for b in PFS if 16 - NS <= b < 15)})\nv_xor_b32 v{NBR}, 0x80000000, v{NBR}\nv_xor_b32 v{NBI}, 0x80000000, v{NBI}\ns_nop 7\ns_nop 7"]
    er, ei, nr, ni = 104, 105, 106, 107
    for t in range(32):
        m, r, bc = (MLO, RLO, t) if t < 16 else (MHI, RHI, t - 16)
        S.append(f"v_fmac_f32_dpp v{gre(t)}, v{m}, v{NBR} row_newbcast:{bc} {DPP}\nv_fmac_f32_dpp v{gim(t)}, v{m}, v{NBI} row_newbcast:{bc} {DPP}")
        S.append(f"v_mul_f32_dpp v{gre(t)}, v{r}, v{gre(t)} row_newbcast:{bc} {DPP}\nv_mul_f32_dpp v{gim(t)}, v{r}, v{gim(t)} row_newbcast:{bc} {DPP}")
        if t == 0:
            S.append(f"v_mov_b32 v{er}, v{gre(0)}\nv_mov_b32 v{ei}, v{gim(0)}")
        else:
            S.append(f"v_fma_f32 v{nr}, v{AR}, v{er}, v{gre(t)}\nv_fma_f32 v{ni}, v{AR}, v{ei}, v{gim(t)}")
            S.append(f"v_fma_f32 v{nr}, -v{AI}, v{ei}, v{nr}\nv_fma_f32 v{ni}, v{AI}, v{er}, v{ni}")
            er, nr = nr, er
            ei, ni = ni, ei
    S.append(f"v_mov_b32 v{LOR}, v{er}\nv_mov_b32 v{LOI}, v{ei}\ns_nop 1\n"
             f"v_permlane32_swap_b32 v{LOR}, v{er}\nv_permlane32_swap_b32 v{LOI}, v{ei}\ns_nop 1")
    S.append(cfma(110, 111, P32R, P32I, LOR, LOI, er, ei))
    S.append(f"s_lshl_b32 s{T3}, s{S_W}, 8\ns_add_u32 s{T3}, s{T3}, 0x{L_AGL:x}\nv_add_u32 v38, s{T3}, v{VC8}\nds_write_b64 v38, v[110:111]")
    S.append(('note', 'pub'))
    S.append(f"v_lshrrev_b32 v2, 5, v1\nv_lshlrev_b32 v2, 12, v2\nv_lshl_add_u32 v2, v{VC8}, 1, v2")
    S.append(f"s_lshl_b32 s81, s{S_PT}, 5\ns_add_u32 s81, s81, s{S_CH}\ns_lshl_b32 s81, s81, 4\ns_add_u32 s81, s81, s{S_WN}\ns_lshl_b32 s81, s81, 9\ns_add_u32 s82, s81, 0x400000")
    S.append(('bar', carbar))
    cr, ci, tr, ti = 104, 105, 106, 107
    S.append(f"ds_read_b64 v[{cr}:{ci}], v38 offset:{L_CAR-L_AGL}")
    if not spare:
        BQ = 112
        S.append(f"v_lshrrev_b32 v36, 5, v1\nv_lshlrev_b32 v36, 4, v36\ns_lshl_b32 s{T3}, s{S_FT}, 1\ns_add_u32 s{T3}, s{T3}, s{S_WM}\ns_lshl_b32 s{T3}, s{T3}, 7")
        S += [f"buffer_load_dwordx4 v[{BQ+4*i}:{BQ+3+4*i}], v36, s[{SR_B1}:{SR_B1+3}], s{T3} offen offset:{32*i}" for i in range(4)]
    S.append(('lds',))
    S.append(cfma(tr, ti, P32R, P32I, cr, ci, LOR, LOI))
    S.append(f"v_cmp_lt_u32 vcc, 31, v1\ns_nop 1\nv_cndmask_b32 v{cr}, v{cr}, v{tr}, vcc\nv_cndmask_b32 v{ci}, v{ci}, v{ti}, vcc")
    gr, gi, nr, ni = cr, ci, tr, ti
    for t in range(32):
        S.append(f"v_fma_f32 v{nr}, v{AR}, v{gr}, v{gre(t)}\nv_fma_f32 v{ni}, v{AR}, v{gi}, v{gim(t)}")
        S.append(f"v_fma_f32 v{nr}, -v{AI}, v{gi}, v{nr}\nv_fma_f32 v{ni}, v{AI}, v{gr}, v{ni}")
        gr, nr = nr, gr
        gi, ni = ni, gi
        S.append(f"v_mul_f32 v{gre(t)}, v{CR}, v{gr}\nv_mul_f32 v{gim(t)}, v{CR}, v{gi}")
        S.append(f"v_fma_f32 v{gre(t)}, -v{CI}, v{gi}, v{gre(t)}\nv_fma_f32 v{gim(t)}, -v{CI}, v{gr}, -v{gim(t)}")
        if t % 8 == 7:
            b = t - 7
            for g, so in ((gre, "s81"), (gim, "s82")):
                S.append("\n".join(f"v_cvt_pk_bf16_f32 v{g(b)+i}, v{g(b+2*i)}, v{g(b+2*i+1)}" for i in range(4)))
                S.append(f"buffer_store_dwordx4 v[{g(b)}:{g(b)+3}], v2, s[{SR_HP}:{SR_HP+3}], {so} offen offset:{128*b} sc1")
                if SKS and (t < 31 or g is gre):
                    S.append(('gap', SKS))
    S += flag_units(e, S_FHo, 0 if spare else 3, 16)
    if not spare:
        S.append(srd_s(SR_PF, 'w2', 0, 3584 * 2048 * 2))
        S.append(pf_org())
    return S


def side_gelu(e):
    S = []
    C0 = -2.0 * math.sqrt(2.0 / math.pi) * math.log2(math.e)
    BQ = 112
    S.append(f"s_mov_b32 s82, 0x{f2u(C0*0.044715):x}\nv_mov_b32 v8, 0x{f2u(C0):x}\nv_mov_b32 v12, 0xffff0000\ns_nop 7")
    S.append("v_and_b32 v2, 31, v1\nv_lshrrev_b32 v3, 5, v1\nv_lshlrev_b32 v3, 10, v3\nv_add_u32 v2, v2, v3\nv_lshlrev_b32 v2, 4, v2")
    S.append(f"s_lshl_b32 s{T3}, s{S_FT}, 1\ns_add_u32 s{T3}, s{T3}, s{S_WM}\ns_lshl_b32 s{T3}, s{T3}, 13\ns_lshl_b32 s{T2}, s{S_DT1}, 1\ns_add_u32 s{T2}, s{T2}, s{S_WN}\n"
             f"s_lshl_b32 s{T2}, s{T2}, 6\ns_add_u32 s{T3}, s{T3}, s{T2}\ns_lshl_b32 s81, s{T3}, 4")
    UB = 104
    for j in range(2):
        for s in range(2):
            bq = BQ + 4 * (2 * j + s)
            for i in range(4):
                S.append(f"v_lshlrev_b32 v{UB+2*i}, 16, v{bq+i}\nv_and_b32 v{UB+1+2*i}, v12, v{bq+i}")
            for jn in range(2):
                a = ACM + 32 * j + 16 * jn + 8 * s
                for i in range(4):
                    x0, x1 = a + 2 * i, a + 2 * i + 1
                    t0, t1 = (36, 37) if i & 1 else (34, 35)
                    S.append(rb1(x0, x0) + "\n" + rb1(x1, x1))
                    S.append(f"v_add_f32 v{x0}, v{x0}, v{UB+2*i}\nv_add_f32 v{x1}, v{x1}, v{UB+2*i+1}")
                    S.append(rb1(x0, x0) + "\n" + rb1(x1, x1))
                    S.append(f"v_mul_f32 v{t0}, v{x0}, v{x0}\nv_mul_f32 v{t1}, v{x1}, v{x1}")
                    S.append(f"v_fma_f32 v{t0}, v{t0}, s82, v8\nv_fma_f32 v{t1}, v{t1}, s82, v8")
                    S.append(f"v_mul_f32 v{t0}, v{t0}, v{x0}\nv_mul_f32 v{t1}, v{t1}, v{x1}")
                    S.append(f"v_exp_f32 v{t0}, v{t0}")
                    S.append(f"v_exp_f32 v{t1}, v{t1}")
                    S.append(f"v_add_f32 v{t0}, 1.0, v{t0}\nv_add_f32 v{t1}, 1.0, v{t1}")
                    S.append(f"v_rcp_f32 v{t0}, v{t0}")
                    S.append(f"v_rcp_f32 v{t1}, v{t1}")
                    S.append(f"v_mul_f32 v{x0}, v{x0}, v{t0}\nv_mul_f32 v{x1}, v{x1}, v{t1}\nv_cvt_pk_bf16_f32 v{a+i}, v{x0}, v{x1}")
                S.append(f"s_add_u32 s{T3}, s81, 0x{((4*j+2*s)*1024+32*jn)*16:x}\n"
                         f"buffer_store_dwordx4 v[{a}:{a+3}], v2, s[{SR_U}:{SR_U+3}], s{T3} offen sc1")
    S += flag_units(e, S_FUo, 8, 6)
    return S


def compute_pro(e):
    l = e.lab("Lcl")
    srd(e, SR_FLG, 'ws', WS_FLG, 16384)
    e(f"s_cmp_lg_u32 s2, 0\ns_cbranch_scc1 {l}\nv_mov_b32 v8, 0\nv_mov_b32 v9, 0\nv_mov_b32 v10, 0\nv_mov_b32 v11, 0\ns_lshl_b32 s{T0}, s{S_W}, 12")
    for i in range(4):
        e(f"buffer_store_dwordx4 v[8:11], v2, s[{SR_FLG}:{SR_FLG+3}], s{T0} offen offset:{i*1024} sc1")
    e(f"{l}:\nv_mov_b32 v6, v2")
    if NB0 + NB1:
        srd(e, 96, 'w1', 0, 14 * MB)
        e(pf_org() + f"\ns_add_u32 s{S_PFO}, s{S_PFO}, 0x{(14-NB0-NB1)*MB:x}")
    for i in range(NB0):
        e(pf_ld(112, MB, 96))
    e(f"s_lshl_b32 s{T2}, s{S_PT}, 1\ns_add_u32 s{T2}, s{T2}, s{S_WN}\ns_lshl_b32 s{S_G32}, s{T2}, 5")
    e(f"s_lshl_b32 s{S_CH}, s{S_LT}, 1\ns_add_u32 s{S_CH}, s{S_CH}, s{S_WM}")
    for d, hi, sh, lo, off in ((S_FHo, S_LT, 4, S_PT, F_H), (S_FUo, S_DT1, 5, S_FT, F_U), (S_FXo, S_ST, 3, S_DT2, F_X)):
        e(f"s_lshl_b32 s{d}, s{hi}, {sh}\ns_add_u32 s{d}, s{d}, s{lo}\ns_lshl_b32 s{d}, s{d}, 2\ns_add_u32 s{d}, s{d}, s{S_W}\n"
          f"s_lshl_b32 s{d}, s{d}, 2\ns_add_u32 s{d}, s{d}, {off}")
    e(f"s_mov_b32 s{S_SLOT}, 0")
    srd(e, SR_HH, 'ws', WS_HH, 4 * MB)
    srd(e, SR_HP, 'ws', WS_HP, 8 * MB)
    srd(e, SR_U, 'ws', WS_U, 1024 * 3584 * 2)
    srd(e, SR_B1, 'b1', 0, 3584 * 2)
    srd(e, SR_ST, 'ws', WS_ST, 65536)
    for op, w in ((OPS['bu'][0], S_WM), (OPS['bu'][1], S_WN)):
        cw_base(e, op, w)
    e(f"v_bfe_u32 v38, v1, 2, 2\nv_mul_u32_u24 v38, {LROW}, v38\nv_bfe_u32 v3, v1, 1, 1\nv_lshl_add_u32 v38, v3, 3, v38\nv_lshrrev_b32 v3, 4, v1\nv_lshl_add_u32 v38, v3, 4, v38")
    e(f"v_and_b32 v3, 1, v1\nv_lshl_add_u32 v38, v3, 6, v38\ns_lshl_b32 s{T0}, s{S_W}, 7\ns_add_u32 s{T0}, s{T0}, 0x{LNL:x}\nv_add_u32 v38, s{T0}, v38")
    l = e.lab("Lcl")
    if not TLP and TLW:
        e("s_waitcnt vmcnt(0)")
        tlb_touch(e)
        return
    e(f"s_waitcnt vmcnt({4+NB0})\ns_cmp_eq_u32 s2, 0\ns_cbranch_scc1 {l}\ns_waitcnt vmcnt({NB0})\n{l}:")


def tlb_touch(e):
    if not TLW:
        return
    lg = TLW.bit_length() - 1
    end = e.lab("Ltl")
    e(f"s_mov_b64 exec, 0x{(1 << TLW) - 1:x}")
    for w, jobs in enumerate(([('w1', 0, 14 * MB, 19)], [('w2', 0, 14 * MB, 19)], [('ws', 4 * MB, 32 * MB, 20)],
                              [('out', 0, 8 * MB, 18), ('cre', 0, 2 * MB, 16), ('cim', 0, 2 * MB, 16)])):
        nx = e.lab("Ltl")
        if w < 3:
            e(f"s_cmp_lg_u32 s{S_W}, {w}\ns_cbranch_scc1 {nx}")
        for nm, off, sz, sh in jobs:
            srd(e, SR_PF, nm, off, sz)
            e(f"v_lshlrev_b32 v3, {sh-lg}, v1\ns_lshl_b32 s{T0}, s{S_IDX}, {sh}\nbuffer_load_dword v112, v3, s[{SR_PF}:{SR_PF+3}], s{T0} offen")
        if w < 3:
            e(f"s_branch {end}\n{nx}:")
    e(f"{end}:\ns_mov_b64 exec, -1")


def clean_mark(e):
    l = e.lab("Lcm")
    e(f"s_cmp_lg_u32 s2, 0\ns_cbranch_scc1 {l}")
    srd(e, SR_PF, 'dbg', 0, 256)
    e(f"v_mov_b32 v3, 1\nv_mov_b32 v4, 0\ns_lshl_b32 s{T0}, s{S_W}, 2\ns_waitcnt vmcnt({NB0})\ns_mov_b64 exec, 1\n"
      f"buffer_store_dword v3, v4, s[{SR_PF}:{SR_PF+3}], s{T0} offen sc1\ns_mov_b64 exec, -1\n{l}:")


CA, CB = 16, 20
OPS = {'bu': (Opnd('KC', 0, 24, CA, 'scan'), Opnd('KC', 16384, 25, CB, 'nat')),
       'm1': (Opnd('KS', 0, 26, CA, 'u8'), Opnd('KB', 16384, 27, CB, 'nat'))}
OPS['ch'] = (OPS['bu'][0], Opnd('KT', 16384, 28, CB, 'nat'))
OPS['uw'] = (Opnd('KB', 0, 29, CA, 'nat'), Opnd('KS', 16384, 39, CB, 'nat'))


def compute(e):
    bu, m1, ch, uw = OPS['bu'], OPS['m1'], OPS['ch'], OPS['uw']
    ts(e, 1)
    gemm_start(e, bu)
    S = []
    for it in range(4):
        S.append(f"ds_read_b64_tr_b16 v[{ACM+4*it}:{ACM+4*it+1}], v38 offset:{512*it}\nds_read_b64_tr_b16 v[{ACM+4*it+2}:{ACM+4*it+3}], v38 offset:{512*it+4*LROW}")
    S.append(f"v_lshlrev_b32 v4, 2, v1\nv_add_u32 v3, 0x{L_STAT:x}, v4\nds_read_b32 v{ACM+16}, v3")
    S.append(f"s_lshl_b32 s81, s2, 14\nv_lshlrev_b32 v3, 4, v0\ns_lshl_b32 s82, s2, 8")
    S.append(('lds',))
    for it in range(4):
        S.append(f"buffer_store_dwordx4 v[{ACM+4*it}:{ACM+4*it+3}], v3, s[{SR_HH}:{SR_HH+3}], s81 offen sc1\ns_add_u32 s81, s81, 4096")
    S.append(l0(e, f"buffer_store_dword v{ACM+16}, v4, s[{SR_ST}:{SR_ST+3}], s82 offen sc1"))
    S.append(srd_s(SR_PF, 'w1', 0, 2048 * 3584 * 2))
    S.append(pf_org())
    S.append(('note', 'st'))
    e2 = E()
    for op, w in ((m1[0], S_WM), (m1[1], S_WN), (ch[1], S_WN), (uw[0], S_WM), (uw[1], S_WN)):
        cw_base(e2, op, w)
    e2(f"v_and_b32 v3, 31, v1\nv_lshlrev_b32 v{VC8}, 3, v3\nv_add_u32 v3, s{S_G32}, v3")
    e2(f"v_lshrrev_b32 v35, 3, v3\nv_lshlrev_b32 v35, 8, v35\nv_and_b32 v3, 7, v3\nv_lshl_add_u32 v35, v3, 2, v35")
    e2(f"v_lshrrev_b32 v34, 5, v1\nv_lshlrev_b32 v34, 10, v34\nv_bfe_u32 v3, v1, 3, 1\nv_lshl_add_u32 v34, v3, 8, v34\nv_and_b32 v3, 7, v1\nv_lshl_add_u32 v34, v3, 2, v34")
    e2(f"s_lshl_b32 s81, s{S_CH}, 11\ns_mov_b32 s82, 32768")
    e2(f"s_lshl_b32 s{T0}, s{S_WN}, 10\ns_add_u32 s{T0}, s{T0}, 0x{L_CON:x}\nv_lshl_add_u32 v36, v{VC8}, 2, s{T0}")
    S += e2.L
    S.append(('bar', lambda: 5))
    S.append(f"ds_read_b128 v[{AR}:{AR+3}], v36\nds_read_b64 v[{P32R}:{P32I}], v36 offset:16")
    sd = Side(S)
    CK = 16 - NS

    def stat_loads():
        for v, o in ((MLO, 0), (MHI, 512), (RLO, 32), (RHI, 544)):
            e(f"buffer_load_dword v{v}, v34, s[{SR_ST}:{SR_ST+3}], s81 offen offset:{o}")
        e(f"buffer_load_dword v{NBR}, v35, s[{SR_ST}:{SR_ST+3}], 0 offen offset:64\nbuffer_load_dword v{NBI}, v35, s[{SR_ST}:{SR_ST+3}], s82 offen offset:64")

    pre = {ARR: [lambda: e(f"s_waitcnt vmcnt({sum(1 for b in PFS if b < ARR)})")]}
    post = {CK: [stat_loads]}
    post1 = {}
    for b in PFS:
        (post if b < 15 else post1).setdefault(b if b < 15 else max(b - 16, 0), []).append(lambda: e(pf_ld(112, MB)))
    if TSL == "bu":
        for n, k in enumerate((1, 4, 7, 10, 13)):
            post.setdefault(k, []).append(lambda n=n: ts(e, 2 + n, "bu"))
    if TSL == "b2":
        for n, k in enumerate((6, 7, 8, 9, 10, 11, 13, 14)):
            post.setdefault(k, []).append(lambda n=n: ts(e, 2 + n, "b2"))
    for k in range(15):
        assert k < PF0 or 'st' in sd.notes
        step(e, bu, bu, ACB, sd, k == 0, pre.get(k), post.get(k))
    assert not sd.q
    spare, join = e.lab("Lcs"), e.lab("Lcj")
    e(f"s_cmp_ge_u32 s{S_IDX}, 28\ns_cbranch_scc1 {spare}")
    step(e, bu, m1, ACB)
    ts(e, 2)
    sd = Side([])
    sd.q = side_scan(e, lambda: sd.notes['pub'] + GA + 4)
    post = post1
    if TSL == "m1":
        for n, k in enumerate((3, 7, 11, 15, 19, 23)):
            post.setdefault(k, []).append(lambda n=n: ts(e, 3 + n, "m1"))
        ts(e, 2, "m1")
    nw = gemm(e, m1, ch, ACM, 32, sd, post=post, name="m1", rpost=[lambda: e(pf_ld(30, 896 * 1024))] if PFS and "now2" not in OPT else None)
    NW2[0] = nw if PFS and "now2" not in OPT else 0
    ts(e, 9, "m1")
    PUB = 16 + sd.notes['pub']
    assert max(PFS, default=0) < PUB + GA + 3
    ts(e, 3)
    post = {}
    if TSL == "ch":
        for n, k in enumerate((1, 3, 5, 8, 11, 13)):
            post.setdefault(k, []).append(lambda n=n: ts(e, 3 + n, "ch"))
        ts(e, 2, "ch")
    gemm(e, ch, uw, ACB, 16, Side(side_gelu(e), BUDG), post=post, name="ch")
    ts(e, 9, "ch")
    e(f"s_branch {join}")
    e(f"{spare}:")
    step(e, bu, None, ACB)
    ts(e, 2)
    Side(side_scan(e, None, True)).flush(e)
    if NCW and "nopf" not in OPT:
        l = e.lab("Lcw")
        srd(e, SR_PF, 'w2', 0, 14 * MB)
        e(f"s_sub_u32 s{S_PFO}, s2, 224\ns_lshl_b32 s{S_PFO}, s{S_PFO}, 2\ns_add_u32 s{S_PFO}, s{S_PFO}, s{S_W}\ns_lshl_b32 s{S_PFO}, s{S_PFO}, 9\n"
          f"s_add_u32 s{S_PFO}, s{S_PFO}, 0x{14*MB-NCW*65536:x}\ns_mov_b32 s{S_CNT}, {NCW}\n{l}:")
        for k in range(4):
            e(f"s_buffer_load_dwordx2 s[6:7], s[{SR_PF}:{SR_PF+3}], s{S_PFO} offset:{k*128+60}")
        e(f"s_add_u32 s{S_PFO}, s{S_PFO}, 0x10000\ns_waitcnt lgkmcnt(8)\ns_sub_u32 s{S_CNT}, s{S_CNT}, 1\ns_cmp_lg_u32 s{S_CNT}, 0\ns_cbranch_scc1 {l}")
        ts(e, 7)
    e("s_barrier")
    ts(e, 3)
    gemm_start(e, ch)
    gemm(e, ch, uw, ACB, 16, None, name="ch-spare")
    e(f"{join}:")
    ts(e, 4)
    rolled(e, uw, ACB, f"s_cmp_eq_u32 s{S_KH}, 0\ns_cselect_b32 s{S_CNT}, {KO-1}, {55-KO}")
    step(e, uw, None, ACB)
    ts(e, 5)
    snd = e.lab("Lcx")
    e(f"s_cmp_eq_u32 s{S_KH}, 1\ns_cbranch_scc1 {snd}")
    e(f"s_mul_i32 s{T0}, s{S_W}, {64*272}\nv_and_b32 v4, 31, v1\nv_mul_u32_u24 v4, 272, v4\nv_lshrrev_b32 v3, 5, v1\nv_lshl_add_u32 v4, v3, 7, v4\nv_add_u32 v4, s{T0}, v4")
    e("s_nop 7\ns_nop 3")
    for j in range(2):
        for jn in range(2):
            for q in range(4):
                a = ACB + 32 * j + 16 * jn + 4 * q
                e(f"ds_write_b128 v4, v[{a}:{a+3}] offset:{jn*32*272+j*64+q*16}")
    e("s_waitcnt lgkmcnt(0)\ns_barrier")
    ts(e, 6)
    ts_store(e)
    e("s_endpgm")
    e(f"{snd}:")
    srd(e, 56, 'ws', WS_XCH, 4 * MB)
    e(f"s_sub_u32 s{T0}, s{S_FXo}, {F_X}\ns_lshl_b32 s{T0}, s{T0}, 11\ns_add_u32 s{T1}, s{T0}, 4096\nv_lshlrev_b32 v2, 4, v1\ns_nop 7\ns_nop 3")
    for blk in range(8):
        a = ACB + 8 * blk
        for i in range(4):
            e(f"v_cvt_pk_f16_f32 v{a+i}, v{a+2*i}, v{a+2*i+1}")
        e(f"buffer_store_dwordx4 v[{a}:{a+3}], v2, s[56:59], s{T1 if blk >= 4 else T0} offen offset:{(blk&3)*1024} sc1")
    e(f"v_mov_b32 v36, 0\nv_mov_b32 v3, 1\ns_waitcnt vmcnt(0)\ns_mov_b64 exec, 1\nbuffer_store_dword v3, v36, s[{SR_FLG}:{SR_FLG+3}], s{S_FXo} offen sc1\ns_mov_b64 exec, -1")
    ts(e, 6)
    ts_store(e)
    return PUB


def gen(e):
    name = NAME + "_kernel"
    e(f".globl {name}\n.p2align 8\n.type {name},@function\n{name}:")
    e("s_cmp_ge_u32 s2, 256\ns_cbranch_scc1 L_end")
    e("s_load_dwordx16 s[4:19], s[0:1], 0\ns_load_dwordx16 s[20:35], s[0:1], 64\ns_load_dwordx2 s[36:37], s[0:1], 128")
    ts(e, 14)
    ts(e, 0)
    e(f"v_lshrrev_b32 v2, 6, v0\nv_and_b32 v1, 63, v0\nv_readfirstlane_b32 s{S_WAVE}, v2\nv_lshlrev_b32 v2, 4, v1\nv_mov_b32 v4, 0")
    e(f"s_lshl_b32 s{T0}, s2, 3\ns_add_u32 s{T0}, s{T0}, s{S_WAVE}\ns_lshl_b32 s{T0}, s{T0}, 11\ns_and_b32 s{T1}, s{T0}, 0x{2*MB-1:x}\ns_lshr_b32 s{T2}, s{T0}, 10")
    e(f"s_mov_b32 s58, 0x{4*MB:x}\ns_mov_b32 s59, 0x20000\ns_mov_b32 s62, 0x{2*MB:x}\ns_mov_b32 s63, 0x20000\ns_mov_b32 s66, 4096\ns_mov_b32 s67, 0x20000")
    e("s_cmp_lt_u32 s2, 128\ns_waitcnt lgkmcnt(0)")
    e(f"s_mov_b32 s56, s{P['x']}\ns_mov_b32 s57, s{P['x']+1}")
    e(f"buffer_load_dwordx4 v[{LX}:{LX+3}], v2, s[56:59], s{T0} offen\nbuffer_load_dwordx4 v[{LX+4}:{LX+7}], v2, s[56:59], s{T0} offen offset:1024")
    e(f"s_cselect_b32 s60, s{P['bre']}, s{P['bim']}\ns_cselect_b32 s61, s{P['bre']+1}, s{P['bim']+1}\ns_mov_b32 s64, s{P['b2']}\ns_mov_b32 s65, s{P['b2']+1}")
    e(f"buffer_load_dwordx4 v[{LBQ}:{LBQ+3}], v2, s[60:63], s{T1} offen\nbuffer_load_dwordx4 v[{LBQ+4}:{LBQ+7}], v2, s[60:63], s{T1} offen offset:1024")
    e(f"buffer_load_ushort v{LS_+3}, v4, s[64:67], s{T2} offen")
    if "nocp" not in OPT:
        e(f"s_getpc_b64 s[96:97]\nL_pc:\ns_lshr_b32 s98, s2, 3\ns_lshl_b32 s98, s98, 3\ns_add_u32 s98, s98, s{S_WAVE}\ns_mul_i32 s98, s98, {128*NCP}\n"
          f"s_min_u32 s98, s98, (L_end-{name}-{128*NCP})&~127\ns_sub_u32 s96, s96, L_pc-{name}\ns_subb_u32 s97, s97, 0")
    X, I = S_XCD, S_IDX
    e(f"s_and_b32 s{S_W}, s{S_WAVE}, 3\ns_lshr_b32 s{S_WM}, s{S_W}, 1\ns_and_b32 s{S_WN}, s{S_W}, 1")
    e(f"s_and_b32 s{X}, s2, 7\ns_lshr_b32 s{I}, s2, 3")
    e(f"s_and_b32 s{S_LT}, s{X}, 3\ns_lshl_b32 s{S_LT}, s{S_LT}, 2\ns_and_b32 s{T0}, s{I}, 3\ns_add_u32 s{S_LT}, s{S_LT}, s{T0}")
    e(f"s_lshr_b32 s{S_PT}, s{X}, 2\ns_lshl_b32 s{S_PT}, s{S_PT}, 3\ns_lshr_b32 s{T0}, s{I}, 2\ns_add_u32 s{S_PT}, s{S_PT}, s{T0}")
    e(f"s_and_b32 s{S_DT1}, s{X}, 1\ns_lshl_b32 s{S_DT1}, s{S_DT1}, 2\ns_and_b32 s{T0}, s{I}, 3\ns_add_u32 s{S_DT1}, s{S_DT1}, s{T0}")
    e(f"s_lshr_b32 s{S_FT}, s{X}, 1\ns_mul_i32 s{S_FT}, s{S_FT}, 7\ns_lshr_b32 s{T0}, s{I}, 2\ns_add_u32 s{S_FT}, s{S_FT}, s{T0}")
    e(f"s_and_b32 s{S_KH}, s{X}, 1")
    e(f"s_bfe_u32 s{S_ST}, s{X}, 0x10001\ns_lshl_b32 s{S_ST}, s{S_ST}, 3\ns_and_b32 s{T0}, s{I}, 7\ns_add_u32 s{S_ST}, s{S_ST}, s{T0}")
    e(f"s_lshr_b32 s{S_DT2}, s{X}, 2\ns_lshl_b32 s{S_DT2}, s{S_DT2}, 2\ns_lshr_b32 s{T0}, s{I}, 3\ns_add_u32 s{S_DT2}, s{S_DT2}, s{T0}")
    e(f"s_cmp_lt_u32 s{S_WAVE}, 4\ns_cbranch_scc1 L_compute")
    ec = E()
    for x, d in ((e, 26), (ec, 6)):
        for i in range(NCP if "nocp" not in OPT else 0):
            x(f"s_load_dwordx2 s[{d}:{d+1}], s[96:97], s98 offset:{128*i+60}")
    ld = loader_pro(e)
    compute_pro(ec)
    ln_row(ec)
    ln_tail(ec)
    clean_mark(ec)
    if TLP:
        tlb_touch(ec)
    for i in range(NB1):
        ec(pf_ld(112, MB, 96))
    if NB2:
        srd(ec, 96, 'w2', 0, 14 * MB)
        ec(pf_org())
    for i in range(NB2):
        ec(pf_ld(112, MB, 96))
    PUB = compute(ec)
    print("PUB", PUB, file=sys.stderr)
    loader(e, ld, PUB)
    e(".p2align 6\nL_compute:")
    e.L += ec.L
    e("L_end:\ns_endpgm")
    e(f""".section .rodata,"a"
.p2align 6
.amdhsa_kernel {name}
  .amdhsa_next_free_vgpr 256
  .amdhsa_next_free_sgpr 102
  .amdhsa_accum_offset 256
  .amdhsa_group_segment_fixed_size 0
  .amdhsa_kernarg_size 136
  .amdhsa_user_sgpr_count 2
  .amdhsa_user_sgpr_kernarg_segment_ptr 1
  .amdhsa_system_sgpr_workgroup_id_x 1
  .amdhsa_float_denorm_mode_32 3
.end_amdhsa_kernel""")


def main(path):
    ref = open(f"cdna_kernels/{NAME}.s.ref").read().splitlines()
    hdr = [l for l in ref if l.startswith(";") and "@launch" not in l and "Override" not in l and "grid=ceil" not in l][:18]
    e = E()
    gen(e)
    out = "\n".join(hdr) + "\n"
    if "list" in OPT:
        out += f"; @launch kernel={NAME}_kernel grid=(256,1,1) block=(512,1,1) lds={LDS_SIZE}\n"
    else:
        out += f"; @launch grid=(256,1,1) block=(512,1,1) lds={LDS_SIZE}\n"
    out += '.amdgcn_target "amdgcn-amd-amdhsa--gfx950"\n.text\n'
    out += "\n".join(l for l in e.L if l) + "\n"
    open(path, "w").write(out)


if __name__ == "__main__":
    main(sys.argv[1] if len(sys.argv) > 1 else f"cdna_kernels/{NAME}.s")
```
